```python
import torch

def _softmax(x, axis=-1):
    return torch.softmax(x, dim=axis)
def _gelu(x):
    return torch.nn.functional.gelu(x, approximate="tanh")
def _silu(x):
    return torch.nn.functional.silu(x)
def _sigmoid(x):
    return torch.sigmoid(x)
def _layernorm(x, axis=-1, eps=1e-5):
    m = x.mean(dim=axis, keepdim=True)
    v = x.var(dim=axis, keepdim=True, unbiased=False)
    return (x - m) / torch.sqrt(v + eps)
def _scatter_add(tgt, idx, src, axis=0):
    return tgt.clone().index_add_(axis, idx, src)
def _segment_sum(src, seg, n):
    out = torch.zeros((n,) + src.shape[1:], dtype=src.dtype)
    return out.index_add_(0, seg, src)
def _pad(x, pw):
    flat = tuple(v for pair in reversed(pw) for v in pair)
    return torch.nn.functional.pad(x, flat)

kernel_name = 'standalone__fused_io_aware_attn__prompt'

def setup_inputs():

    _w = (lambda a: (lambda t: t.to(torch.bfloat16) if t.is_floating_point() else t)(torch.as_tensor(a)))
    B, H, S = 1, 32, 2048
    Dh = max(1, 576 // 32)
    return {
        "q": _w((lambda *s: torch.randn(*s, dtype=torch.bfloat16) * 0.8)(B, H, S, Dh)),
        "k": _w((lambda *s: torch.randn(*s, dtype=torch.bfloat16) * 0.8)(B, H, S, Dh)),
        "v": _w((lambda *s: torch.randn(*s, dtype=torch.bfloat16) * 0.05)(B, H, S, Dh)),
    }

def reference(q, k, v):
    scale = q.shape[-1] ** -0.5
    s = torch.einsum('bhqd,bhkd->bhqk', q, k) * scale
    p = _softmax(s, axis=-1)
    return torch.einsum('bhqk,bhkd->bhqd', p, v)
```

```python
import re

def R(a, n=1):
    return set(range(a, a + n))
def vr(a, n=1):
    return f"v{a}" if n == 1 else f"v[{a}:{a+n-1}]"

class Ins:
    __slots__ = ("text", "kind", "rd", "wr", "srcc", "passes", "sw", "sr")
    def __init__(self, text, kind, rd=(), wr=(), srcc=(), passes=0, sw=(), sr=()):
        self.text = text; self.kind = kind
        self.rd = set(rd); self.wr = set(wr); self.srcc = set(srcc); self.passes = passes
        self.sw = set(sw); self.sr = set(sr)

MF = ("mfma",)
class Emitter:
    def __init__(self):
        self.out = []
        self.hist = []
        self.lds = []
        self.vm = []
        self.nops = 0
        self.log = []
        self.nins = 0
    def raw(self, text):
        self.out.append(text)
    def label(self, name):
        self.out.append(name + ":")
    def comment(self, t):
        self.out.append("    ; " + t)
    def _push(self, ins):
        self.out.append("    " + ins.text)
        self.hist.append(ins)
        self.nins += 1
        if len(self.hist) > 64: self.hist = self.hist[-64:]
    def nop(self, n):
        while n > 0:
            k = min(n, 16)
            self.out.append(f"    s_nop {k-1}")
            for _ in range(k): self.hist.append(Ins("nop", "other"))
            self.nops += k
            n -= k
    def reset_hist(self):
        self.hist = []
    def need(self, ins):
        need = 0; why = None
        n = len(self.hist)
        for d in range(n):
            p = self.hist[n - 1 - d]
            req = 0
            isvalu = ins.kind in ("valu", "trans", "perm")
            pvalu = p.kind in ("valu", "trans", "perm")
            if pvalu and ins.kind == "mfma" and (p.wr & (ins.rd | ins.srcc)): req = max(req, 2)
            if pvalu and ins.kind == "perm" and (p.wr & ins.rd): req = max(req, 2)
            if p.kind == "trans" and ins.kind in ("valu", "perm") and (p.wr & ins.rd): req = max(req, 1)
            if p.kind == "trans" and ins.kind in ("ds_write", "vstore", "vload", "dma", "ds_read") and (p.wr & ins.rd): req = max(req, 1)
            if p.kind == "mfma":
                P = p.passes
                raw = {4: 8, 8: 12, 16: 20}[P]; ovl = {4: 6, 8: 10, 16: 18}[P]; war = {4: 3, 8: 7, 16: 15}[P]
                if ins.kind == "mfma":
                    if p.wr & ins.srcc:
                        same = (p.wr == ins.srcc and p.passes == ins.passes and p.text.split()[0] == ins.text.split()[0])
                        req = max(req, 0 if same else ovl)
                    if p.wr & ins.rd: req = max(req, raw)
                    if (p.wr & ins.wr) and not (p.wr & ins.srcc): req = max(req, ovl)
                else:
                    if ins.kind != "other" and ins.kind != "salu":
                        if p.wr & (ins.rd | ins.wr): req = max(req, raw)
                    if isvalu and (p.srcc & ins.wr): req = max(req, war)
            if p.kind == "vstore" and isvalu and (p.rd & ins.wr): req = max(req, 2)
            if pvalu and p.sw:
                if isvalu and (p.sw & ins.sr): req = max(req, 2)
                if ins.kind in ("vload", "dma", "vstore") and (p.sw & ins.sr): req = max(req, 5)
                if ins.kind == "salu" and (p.sw & ins.sr): req = max(req, 4)
            if p.kind == "salu" and "m0" in p.sw and ins.kind == "dma": req = max(req, 1)
            if pvalu and ins.kind == "rfl" and (p.wr & ins.rd): req = max(req, 1)
            if pvalu and "rfl" in ins.text and False: pass
            if req - d > need:
                need = req - d; why = p.text
        return need, why
    def waits(self, ins):
        regs = ins.rd | ins.wr | ins.srcc
        idx = -1
        for i, (tag, r) in enumerate(self.lds):
            if r & regs: idx = i
        l = None
        if idx >= 0:
            l = len(self.lds) - 1 - idx
        idx = -1
        for i, (tag, r) in enumerate(self.vm):
            if r & regs: idx = i
        v = None
        if idx >= 0:
            v = len(self.vm) - 1 - idx
        if l is not None or v is not None:
            self.wait(lgkm=l, vm=v)
    def wait(self, lgkm=None, vm=None):
        t = []
        if vm is not None:
            if vm < len(self.vm):
                assert vm <= 63
                t.append(f"vmcnt({vm})"); self.vm = self.vm[len(self.vm) - vm:] if vm else []
        if lgkm is not None:
            if lgkm < len(self.lds):
                lg = min(lgkm, 15)
                t.append(f"lgkmcnt({lg})"); self.lds = self.lds[len(self.lds) - lg:] if lg else []
        if t:
            self._push(Ins("s_waitcnt " + " ".join(t), "other"))
    def wait_vm_tag(self, tag):
        idx = -1
        for i, (tg, r) in enumerate(self.vm):
            if tg == tag: idx = i
        if idx >= 0: self.wait(vm=len(self.vm) - 1 - idx)
    def emit(self, ins, tag=None):
        self.waits(ins)
        n, why = self.need(ins)
        if n > 0:
            self.log.append(f"nop {n} before [{ins.text}] after [{why}]")
            self.nop(n)
        self._push(ins)
        if ins.kind == "ds_read": self.lds.append((tag, set(ins.wr)))
        elif ins.kind == "ds_write": self.lds.append((tag, set()))
        elif ins.kind == "vload": self.vm.append((tag, set(ins.wr)))
        elif ins.kind in ("dma", "vstore"): self.vm.append((tag, set()))
        assert len(self.vm) <= 63, "vmcnt overflow"
    def valu(self, text, wr=(), rd=(), sw=(), sr=()):
        self.emit(Ins(text, "valu", rd=rd, wr=wr, sw=sw, sr=sr))
    def trans(self, text, wr=(), rd=()):
        self.emit(Ins(text, "trans", rd=rd, wr=wr))
    def salu(self, text, sw=(), sr=()):
        self.emit(Ins(text, "salu", sw=sw, sr=sr))
    def other(self, text):
        self.emit(Ins(text, "other"))
    def text(self):
        return "\n".join(self.out) + "\n"
```

```python
import sys, os, argparse
sys.path.insert(0, os.path.dirname(os.path.abspath(__file__)))
from asmlib import *

NAME = "standalone__fused_io_aware_attn__prompt"
HEADER = open("cdna_kernels/" + NAME + ".s.ref").read().split("; Override launch")[0]

KR = 0
KM = 8192
VM = KM + 65536
VR = VM + 65536 + 128
LDS_BYTES = VR + 16384
HEAD_BYTES = 2048 * 36
TENSOR_BYTES = 32 * HEAD_BYTES

vTID = 0
vLANE, vKsrc, vVsrc, vRsrc, vQr, vKa, vKr = 1, 2, 3, 4, 5, 6, 7
vVa = [8, 9, 10, 11]
vVrw, vIDX, vOst = 12, 13, 14
vT = list(range(15, 24))
vVrem = [24, 26, 28, 30]
SB = [32, 64]
vO = 96
vKA = [[112, 116], [120, 124]]
vKR = [128, 130]
vQ = 132
vB2 = 136
vQraw = 140
vQrraw = 138
vVF = [144, 160]
vB2z = 176
vM = 178
vNV = 184

sW = 3
sQ, sK, sV, sOut = 16, 20, 24, 28
sW1024, sW1152, sW2048, sW2304, sW256 = 32, 33, 34, 35, 36
sOff = 37
sQoff = 38
sTmp = 40

C_SCALE = 1.4426950408889634 / (18.0 ** 0.5)
import struct
def f32bits(x): return struct.unpack("<I", struct.pack("<f", x))[0]

class Gen:
    def __init__(self, opt):
        self.o = opt
        self.e = Emitter()
        self.nstamp = 0

    def stamp(self, name):
        if not self.o.stamps: return
        e = self.e
        i = self.nstamp; self.nstamp += 1
        s = 44 + 2 * i
        assert s + 1 < 100
        e.wait(lgkm=0)
        e.other(f"s_memtime s[{s}:{s+1}]")
        e.raw("    s_waitcnt lgkmcnt(0)")
        self.stampnames = getattr(self, "stampnames", []) + [name]

    def dma_x4(self, srd, vsrc, m0_expr, off_expr, tag):
        e = self.e
        e.salu(f"s_add_u32 m0, s{m0_expr[0]}, {m0_expr[1]}", sw={"m0"})
        e.salu(f"s_add_u32 s{sOff}, s{off_expr[0]}, {off_expr[1]}", sw={f"s{sOff}"})
        e.emit(Ins(f"buffer_load_dwordx4 v{vsrc}, s[{srd}:{srd+3}], s{sOff} offen lds", "dma", rd={vsrc}, sr={f"s{sOff}"}), tag=tag)
    def dma_x1(self, srd, vsrc, m0_expr, off_expr, tag):
        e = self.e
        e.salu(f"s_add_u32 m0, s{m0_expr[0]}, {m0_expr[1]}", sw={"m0"})
        e.salu(f"s_add_u32 s{sOff}, s{off_expr[0]}, {off_expr[1]}", sw={f"s{sOff}"})
        e.emit(Ins(f"buffer_load_dword v{vsrc}, s[{srd}:{srd+3}], s{sOff} offen lds", "dma", rd={vsrc}, sr={f"s{sOff}"}), tag=tag)

    def dma_ktile_w(self, base, tag):
        self.dma_x4(sK, vKsrc, (sW1024, KM + base * 1024), (sW1152, base * 1152), tag)
    def dma_vtile_w(self, base, tag):
        self.dma_x4(sV, vVsrc, (sW1024, VM + base * 1024), (sW1152, base * 1152), tag)
    def dma_krem_w(self, base, tag):
        self.dma_x1(sK, vRsrc, (sW256, KR + base * 256), (sW2304, base * 2304), tag)
    def load_vrem_w(self, base, reg, tag):
        e = self.e
        e.salu(f"s_add_u32 s{sOff}, s{sW2304}, {base*2304}", sw={f"s{sOff}"})
        e.emit(Ins(f"buffer_load_dword v{reg}, v{vRsrc}, s[{sV}:{sV+3}], s{sOff} offen", "vload", rd={vRsrc}, wr={reg}), tag=tag)
    def write_vrem_w(self, base, reg):
        c = base // 8
        self.e.emit(Ins(f"ds_write_b64 v{vVrw}, v[{reg}:{reg+1}] offset:{8*c}", "ds_write", rd={vVrw, reg, reg + 1}))

    def rd_k(self, b, t):
        s = b & 1; d = vKA[s][t]
        self.e.emit(Ins(f"ds_read_b128 {vr(d,4)}, v{vKa} offset:{(2*b+t)*1024}", "ds_read", rd={vKa}, wr=R(d, 4)))
    def rd_kr(self, b):
        s = b & 1; d = vKR[s]
        self.e.emit(Ins(f"ds_read_b32 v{d}, v{vKr} offset:{b*256}", "ds_read", rd={vKr}, wr={d}))
    def rd_v(self, b, g, s2):
        s = b & 1; d = vVF[s] + 4 * g + 2 * s2
        c = b // 8
        off = ((b % 8) * 64 + 16 * g + 4 * s2) * 32
        self.e.emit(Ins(f"ds_read_b64_tr_b16 {vr(d,2)}, v{vVa[c]} offset:{off}", "ds_read", rd={vVa[c]}, wr=R(d, 2)))
    def mm_main(self, b, t, dst=None):
        s = b & 1; D = (SB[b & 1] if dst is None else dst) + 16 * t; A = vKA[s][t]
        self.e.emit(Ins(f"v_mfma_f32_32x32x16_bf16 {vr(D,16)}, {vr(A,4)}, {vr(vQ,4)}, 0", "mfma",
                        rd=R(A, 4) | R(vQ, 4), wr=R(D, 16), passes=8))
    def mm_rem(self, b, B=None, dst=None):
        s = b & 1; D = SB[b & 1] if dst is None else dst; A = vKR[s]
        if B is None: B = vB2
        self.e.emit(Ins(f"v_mfma_f32_32x32x4_2b_bf16 {vr(D,32)}, {vr(A,2)}, {vr(B,2)}, {vr(D,32)}", "mfma",
                        rd=R(A, 2) | R(B, 2), wr=R(D, 32), srcc=R(D, 32), passes=16))
    def mm_pv(self, b, g):
        s = b & 1; A = vVF[s] + 4 * g; B = SB[b & 1] + 8 * g
        self.e.emit(Ins(f"v_smfmac_f32_32x32x32_bf16 {vr(vO,16)}, {vr(A,4)}, {vr(B,8)}, v{vIDX}", "mfma",
                        rd=R(A, 4) | R(B, 8) | {vIDX}, wr=R(vO, 16), srcc=R(vO, 16), passes=8))
    def ex(self, b, i):
        r = SB[b & 1] + i
        self.e.trans(f"v_exp_f32 v{r}, v{r}", wr={r}, rd={r})

    def barrier(self):
        self.e.other("s_barrier")

    def prologue(self):
        e = self.e; o = self.o
        e.salu("s_cmp_ge_u32 s2, 0x100")
        e.other("s_cbranch_scc1 L_end")
        if o.stamps:
            self.stamp("start")
        e.other("s_load_dwordx4 s[4:7], s[0:1], 0")
        e.other("s_load_dwordx4 s[8:11], s[0:1], 16")
        if o.stamps:
            e.other("s_load_dwordx2 s[14:15], s[0:1], 40")
        e.valu(f"v_lshrrev_b32 v{vT[0]}, 6, v0", wr={vT[0]}, rd={0})
        e.valu(f"v_and_b32 v{vLANE}, 63, v0", wr={vLANE}, rd={0})
        e.emit(Ins(f"v_readfirstlane_b32 s{sW}, v{vT[0]}", "valu", rd={vT[0]}, sw={f"s{sW}"}))
        t0, t1, t2, t3 = vT[0:4]
        e.valu(f"v_and_b32 v{t0}, 31, v{vLANE}", wr={t0}, rd={vLANE})
        e.valu(f"v_lshrrev_b32 v{t1}, 5, v{vLANE}", wr={t1}, rd={vLANE})
        e.valu(f"v_mul_u32_u24 v{t2}, 36, v{t0}", wr={t2}, rd={t0})
        e.valu(f"v_lshl_add_u32 v{vKsrc}, v{t1}, 4, v{t2}", wr={vKsrc}, rd={t1, t2})
        e.valu(f"v_add_u32 v{vQr}, 32, v{t2}", wr={vQr}, rd={t2})
        e.salu("s_and_b32 s12, s2, 7")
        e.salu("s_lshr_b32 s13, s2, 3")
        e.salu("s_lshr_b32 s39, s13, 3")
        e.salu("s_lshl_b32 s12, s12, 2")
        e.salu("s_add_u32 s12, s12, s39")
        e.salu("s_and_b32 s13, s13, 7")
        e.salu(f"s_mul_i32 s12, s12, {HEAD_BYTES}")
        e.salu(f"s_mul_i32 s13, s13, {256*36}")
        e.salu(f"s_mul_i32 s{sW1152}, s{sW}, 1152", sr={f"s{sW}"})
        e.salu(f"s_add_u32 s{sQoff}, s13, s{sW1152}")
        e.salu(f"s_lshl_b32 s{sW1024}, s{sW}, 10")
        e.salu(f"s_lshl_b32 s{sW2048}, s{sW}, 11")
        e.salu(f"s_lshl_b32 s{sW256}, s{sW}, 8")
        e.salu(f"s_lshl_b32 s{sW2304}, s{sW1152}, 1")
        e.valu(f"v_lshrrev_b32 v{t0}, 1, v{vLANE}", wr={t0}, rd={vLANE})
        e.valu(f"v_and_b32 v{t3}, 1, v{vLANE}", wr={t3}, rd={vLANE})
        e.valu(f"v_mul_u32_u24 v{t0}, 36, v{t0}", wr={t0}, rd={t0})
        e.valu(f"v_lshl_add_u32 v{vVsrc}, v{t3}, 4, v{t0}", wr={vVsrc}, rd={t3, t0})
        e.valu(f"v_mul_u32_u24 v{t0}, 36, v{vLANE}", wr={t0}, rd={vLANE})
        e.valu(f"v_add_u32 v{vRsrc}, 32, v{t0}", wr={vRsrc}, rd={t0})
        e.raw("    s_waitcnt lgkmcnt(0)")
        e.hist.append(Ins("w", "other"))
        for (srd, lo, hi) in ((sQ, 4, 5), (sK, 6, 7), (sV, 8, 9), (sOut, 10, 11)):
            e.salu(f"s_add_u32 s{srd}, s{lo}, s12")
            e.salu(f"s_addc_u32 s{srd+1}, s{hi}, 0")
            e.salu(f"s_and_b32 s{srd+1}, s{srd+1}, 0xffff")
            e.salu(f"s_mov_b32 s{srd+2}, {HEAD_BYTES}")
            e.salu(f"s_mov_b32 s{srd+3}, 0x20000")
        self.stamp("karg")
        e.emit(Ins(f"buffer_load_dwordx4 {vr(vQraw,4)}, v{vKsrc}, s[{sQ}:{sQ+3}], s{sQoff} offen", "vload", rd={vKsrc}, wr=R(vQraw, 4)), tag="q")
        e.emit(Ins(f"buffer_load_dword v{vQrraw}, v{vQr}, s[{sQ}:{sQ+3}], s{sQoff} offen", "vload", rd={vQr}, wr={vQrraw}), tag="q")
        self.dma_ktile_w(0, "k0")
        self.dma_krem_w(0, "k0")
        self.dma_vtile_w(0, "v0")
        self.load_vrem_w(0, vVrem[0], "v0")
        self.dma_ktile_w(8, "c1")
        self.dma_vtile_w(8, "c1")
        e.valu(f"v_lshlrev_b32 v{vKa}, 4, v{vLANE}", wr={vKa}, rd={vLANE})
        e.valu(f"v_add_u32 v{vKa}, {KM}, v{vKa}", wr={vKa}, rd={vKa})
        e.valu(f"v_lshlrev_b32 v{vKr}, 2, v{vLANE}", wr={vKr}, rd={vLANE})
        if KR: e.valu(f"v_add_u32 v{vKr}, {KR}, v{vKr}", wr={vKr}, rd={vKr})
        e.valu(f"v_bfe_u32 v{t0}, v{vLANE}, 2, 2", wr={t0}, rd={vLANE})
        e.valu(f"v_lshl_add_u32 v{t0}, v{t1}, 3, v{t0}", wr={t0}, rd={t1, t0})
        e.valu(f"v_lshlrev_b32 v{t0}, 5, v{t0}", wr={t0}, rd={t0})
        e.valu(f"v_and_b32 v{t2}, 3, v{vLANE}", wr={t2}, rd={vLANE})
        e.valu(f"v_lshl_add_u32 v{t2}, v{t2}, 3, v{t0}", wr={t2}, rd={t2, t0})
        e.valu(f"v_bfe_u32 v{t3}, v{vLANE}, 4, 1", wr={t3}, rd={vLANE})
        e.valu(f"v_cmp_eq_u32 vcc, 1, v{t3}", rd={t3}, sw={"vcc"})
        for c in range(4):
            a, b2 = vT[4], vT[5]
            e.valu(f"v_add_u32 v{a}, {VM + c*16384}, v{t2}", wr={a}, rd={t2})
            e.valu(f"v_add_u32 v{b2}, {VR + 8*c}, v{t0}", wr={b2}, rd={t0})
            e.valu(f"v_cndmask_b32 v{vVa[c]}, v{a}, v{b2}, vcc", wr={vVa[c]}, rd={a, b2}, sr={"vcc"})
        e.valu(f"v_lshlrev_b32 v{t0}, 5, v{vLANE}", wr={t0}, rd={vLANE})
        e.salu(f"s_add_u32 s{sTmp}, s{sW2048}, {VR}")
        e.valu(f"v_add_u32 v{vVrw}, s{sTmp}, v{t0}", wr={vVrw}, rd={t0})
        e.valu(f"v_mov_b32 v{vIDX}, 0xdddddddd", wr={vIDX})
        e.valu(f"v_mov_b32 v{vKR[0]+1}, 0x3f803f80", wr={vKR[0] + 1})
        e.valu(f"v_mov_b32 v{vKR[1]+1}, 0x3f803f80", wr={vKR[1] + 1})
        for c in range(4):
            e.valu(f"v_mov_b32 v{vVrem[c]+1}, 0x3f80", wr={vVrem[c] + 1})
        for i in range(16):
            e.valu(f"v_mov_b32 v{vO+i}, 0", wr={vO + i})
        e.salu(f"s_mov_b32 s{sTmp+1}, 0x{f32bits(C_SCALE):08x}")
        e.salu(f"s_mov_b32 s{sTmp+2}, 0xffff0000")
        for j in range(4):
            a, b2 = vT[4 + 2 * (j & 1)], vT[5 + 2 * (j & 1)]
            e.valu(f"v_lshlrev_b32 v{a}, 16, v{vQraw+j}", wr={a}, rd={vQraw + j})
            e.valu(f"v_and_b32 v{b2}, s{sTmp+2}, v{vQraw+j}", wr={b2}, rd={vQraw + j})
            e.valu(f"v_mul_f32 v{a}, s{sTmp+1}, v{a}", wr={a}, rd={a})
            e.valu(f"v_mul_f32 v{b2}, s{sTmp+1}, v{b2}", wr={b2}, rd={b2})
            e.valu(f"v_cvt_pk_bf16_f32 v{vQ+j}, v{a}, v{b2}", wr={vQ + j}, rd={a, b2})
        a, b2 = vT[4], vT[5]
        e.valu(f"v_lshlrev_b32 v{a}, 16, v{vQrraw}", wr={a}, rd={vQrraw})
        e.valu(f"v_and_b32 v{b2}, s{sTmp+2}, v{vQrraw}", wr={b2}, rd={vQrraw})
        e.valu(f"v_mul_f32 v{a}, s{sTmp+1}, v{a}", wr={a}, rd={a})
        e.valu(f"v_mul_f32 v{b2}, s{sTmp+1}, v{b2}", wr={b2}, rd={b2})
        e.valu(f"v_cvt_pk_bf16_f32 v{vB2}, v{a}, v{b2}", wr={vB2}, rd={a, b2})
        self.stamp("qdone")
        e.wait_vm_tag("k0")
        self.barrier()
        self.stamp("B0a")
        self.rd_k(0, 0)
        self.rd_k(0, 1)
        self.rd_kr(0)
        self.rd_k(1, 0)
        self.mm_main(0, 0)
        self.rd_k(1, 1)
        self.rd_kr(1)
        self.mm_main(0, 1)
        e.wait_vm_tag("v0")
        self.write_vrem_w(0, vVrem[0])
        X = SB[0]
        m0r, m1r = vT[0], vT[1]
        e.valu(f"v_max3_f32 v{m0r}, v{X}, v{X+1}, v{X+2}", wr={m0r}, rd=R(X, 3))
        e.valu(f"v_max3_f32 v{m1r}, v{X+3}, v{X+4}, v{X+5}", wr={m1r}, rd=R(X + 3, 3))
        e.valu(f"v_max3_f32 v{m0r}, v{m0r}, v{X+6}, v{X+7}", wr={m0r}, rd=R(X + 6, 2) | {m0r})
        e.valu(f"v_max3_f32 v{m1r}, v{m1r}, v{X+8}, v{X+9}", wr={m1r}, rd=R(X + 8, 2) | {m1r})
        e.valu(f"v_max3_f32 v{m0r}, v{m0r}, v{X+10}, v{X+11}", wr={m0r}, rd=R(X + 10, 2) | {m0r})
        e.valu(f"v_max3_f32 v{m1r}, v{m1r}, v{X+12}, v{X+13}", wr={m1r}, rd=R(X + 12, 2) | {m1r})
        e.valu(f"v_max3_f32 v{m0r}, v{m0r}, v{X+14}, v{X+15}", wr={m0r}, rd=R(X + 14, 2) | {m0r})
        e.valu(f"v_max_f32 v{m0r}, v{m0r}, v{m1r}", wr={m0r}, rd={m0r, m1r})
        e.valu(f"v_mov_b32 v{m1r}, v{m0r}", wr={m1r}, rd={m0r})
        e.wait(lgkm=0)
        self.barrier()
        e.emit(Ins(f"v_permlane32_swap_b32 v{m0r}, v{m1r}", "perm", rd={m0r, m1r}, wr={m0r, m1r}))
        self.rd_v(0, 0, 0); self.rd_v(0, 0, 1)
        e.valu(f"v_max_f32 v{m0r}, v{m0r}, v{m1r}", wr={m0r}, rd={m0r, m1r})
        e.valu(f"v_cvt_pk_bf16_f32 v{m1r}, -v{m0r}, -v{m0r}", wr={m1r}, rd={m0r})
        self.rd_v(0, 1, 0); self.rd_v(0, 1, 1)
        e.valu(f"v_lshlrev_b32 v{m1r}, 16, v{m1r}", wr={m1r}, rd={m1r})
        e.valu(f"v_add_f32 v{m1r}, v{m0r}, v{m1r}", wr={m1r}, rd={m0r, m1r})
        e.valu(f"v_cvt_pk_bf16_f32 v{vB2+1}, -v{m0r}, -v{m1r}", wr={vB2 + 1}, rd={m0r, m1r})
        self.rd_v(0, 2, 0); self.rd_v(0, 2, 1)
        self.mm_rem(0)
        self.rd_v(0, 3, 0); self.rd_v(0, 3, 1)
        self.stamp("prol")

    def iteration(self, b, NB=32):
        e = self.e; o = self.o
        nxt = b + 1 < NB
        pre = []
        act = {i: [] for i in range(33)}
        def at(i, fn): act[i].append(fn)
        if nxt: at(0, lambda: self.mm_main(b + 1, 0))
        if b > 0: at(4, lambda: self.mm_pv(b - 1, 3))
        if nxt: at(8, lambda: self.mm_main(b + 1, 1))
        at(12, lambda: self.mm_pv(b, 0))
        if nxt: at(o.rpos, lambda: self.mm_rem(b + 1))
        at(o.pv1, lambda: self.mm_pv(b, 1))
        at(o.pv2, lambda: self.mm_pv(b, 2))
        for (pos, fn) in self.hooks.get(b, []):
            at(pos, fn)
        rds = []
        if b + 2 < NB:
            rds += [lambda: self.rd_k(b + 2, 0), lambda: self.rd_k(b + 2, 1), lambda: self.rd_kr(b + 2)]
        if b + 1 < NB:
            for g in range(4):
                for s2 in range(2):
                    rds.append(lambda g=g, s2=s2: self.rd_v(b + 1, g, s2))
        pos = o.rdpos
        for k, fn in enumerate(rds):
            at(pos[k if b + 2 < NB else k + 3], fn)
        for i in range(32):
            for fn in act[i]: fn()
            self.ex(b, i)
        for fn in act[32]: fn()

    def build_hooks(self):
        o = self.o; e = self.e
        H = {}
        def add(b, pos, fn): H.setdefault(b, []).append((pos, fn))
        def chunk_ops(c):
            base = 8 * c
            reg = vVrem[c]
            return [
                lambda: self.load_vrem_w(base, reg, f"c{c+1}"),
                lambda: self.dma_krem_w(base, f"c{c+1}"),
                lambda: self.dma_x4(sK, vKsrc, (sW2048, KM + 2 * base * 1024), (sW2304, base * 2304), f"c{c+1}"),
                lambda: self.dma_x4(sK, vKsrc, (sW2048, KM + 2 * base * 1024 + 1024), (sW2304, base * 2304 + 1152), f"c{c+1}"),
                lambda: self.dma_x4(sV, vVsrc, (sW2048, VM + 2 * base * 1024), (sW2304, base * 2304), f"c{c+1}"),
                lambda: self.dma_x4(sV, vVsrc, (sW2048, VM + 2 * base * 1024 + 1024), (sW2304, base * 2304 + 1152), f"c{c+1}"),
            ]
        for c, it in ((1, o.it_c2), (2, o.it_c3), (3, o.it_c4)):
            ops = chunk_ops(c)
            for k, fn in enumerate(ops):
                add(it, 2 + 5 * k, fn)
        def bar(tags, writes):
            def f():
                for t in tags: e.wait_vm_tag(t)
                for (base, reg) in writes: self.write_vrem_w(base, reg)
                if writes: e.wait(lgkm=0)
                self.barrier()
            return f
        add(2, 0, bar(["c1"], []))
        add(6, 0, bar(["c2"], [(8, vVrem[1])]))
        add(14, 0, bar(["c3"], [(16, vVrem[2])]))
        add(22, 0, bar(["c4"], [(24, vVrem[3])]))
        self.hooks = H

    def epilogue(self, lbl):
        e = self.e
        L = vO + 10
        t = vT
        e.trans(f"v_rcp_f32 v{t[0]}, v{L}", wr={t[0]}, rd={L})
        for i in range(10):
            e.valu(f"v_mul_f32 v{vO+i}, v{vO+i}, v{t[0]}", wr={vO + i}, rd={vO + i, t[0]})
        P = 16
        for j in range(5):
            e.valu(f"v_cvt_pk_bf16_f32 v{P+j}, v{vO+2*j}, v{vO+2*j+1}", wr={P + j}, rd={vO + 2 * j, vO + 2 * j + 1})
        e.emit(Ins(f"v_permlane32_swap_b32 v{P}, v{P+2}", "perm", rd={P, P + 2}, wr={P, P + 2}))
        e.emit(Ins(f"v_permlane32_swap_b32 v{P+1}, v{P+3}", "perm", rd={P + 1, P + 3}, wr={P + 1, P + 3}))
        e.nop(1)
        e.emit(Ins(f"buffer_store_dwordx4 {vr(P,4)}, v{vKsrc}, s[{sOut}:{sOut+3}], s{sQoff} offen", "vstore", rd=R(P, 4) | {vKsrc}))
        e.salu("s_mov_b64 exec, 0xffffffff")
        e.emit(Ins(f"buffer_store_dword v{P+4}, v{vQr}, s[{sOut}:{sOut+3}], s{sQoff} offen", "vstore", rd={P + 4, vQr}))

    def check(self):
        e = self.e
        L = vO + 10
        t = vT
        e.valu(f"v_mul_f32 v{t[0]}, 0, v{vO}", wr={t[0]}, rd={vO})
        e.valu(f"v_mul_f32 v{t[1]}, 0, v{vO+1}", wr={t[1]}, rd={vO + 1})
        for i in range(2, 10):
            r = t[i & 1]
            e.valu(f"v_fma_f32 v{r}, v{vO+i}, 0, v{r}", wr={r}, rd={vO + i, r})
        e.valu(f"v_add_f32 v{t[0]}, v{t[0]}, v{t[1]}", wr={t[0]}, rd={t[0], t[1]})
        e.salu(f"s_mov_b32 s{sTmp}, 0x{f32bits(2.0**-60):08x}")
        e.salu(f"s_mov_b32 s{sTmp+1}, 0x{f32bits(2.0**60):08x}")
        e.valu(f"v_cmp_eq_f32 s[42:43], 0, v{t[0]}", rd={t[0]}, sw={"s42"})
        e.valu(f"v_cmp_le_f32 vcc, s{sTmp}, v{L}", rd={L}, sw={"vcc"})
        e.salu("s_and_b64 s[42:43], s[42:43], vcc", sr={"s42", "vcc"})
        e.valu(f"v_cmp_ge_f32 vcc, s{sTmp+1}, v{L}", rd={L}, sw={"vcc"})
        e.salu("s_and_b64 s[42:43], s[42:43], vcc", sr={"vcc"})
        e.salu("s_cmp_eq_u64 s[42:43], -1")
        e.other("s_cbranch_scc0 L_fallback")

    def fallback(self):
        e = self.e
        e.label("L_fallback")
        e.reset_hist()
        A0, A1, KRp = vKA[0][0], vKA[0][1], vKR[0]
        X = SB[0]
        ka, kr, va, vd = vT[2], vT[3], vT[4], vT[5]
        def W(text): e.raw("    " + text)
        W(f"v_mov_b32 v{vB2z}, v{vB2}")
        W(f"v_mov_b32 v{vB2z+1}, 0")
        W(f"v_mov_b32 v{vM}, 0xff800000")
        def scores():
            W(f"ds_read_b128 {vr(A0,4)}, v{ka}")
            W(f"ds_read_b128 {vr(A1,4)}, v{ka} offset:1024")
            W(f"ds_read_b32 v{KRp}, v{kr}")
            W("s_waitcnt lgkmcnt(0)")
            W(f"v_mfma_f32_32x32x16_bf16 {vr(X,16)}, {vr(A0,4)}, {vr(vQ,4)}, 0")
            W(f"v_mfma_f32_32x32x16_bf16 {vr(X+16,16)}, {vr(A1,4)}, {vr(vQ,4)}, 0")
            W("s_nop 15")
            W(f"v_mfma_f32_32x32x4_2b_bf16 {vr(X,32)}, {vr(KRp,2)}, {vr(vB2z,2)}, {vr(X,32)}")
            W("s_nop 15"); W("s_nop 7")
        W(f"v_mov_b32 v{ka}, v{vKa}")
        W(f"v_mov_b32 v{kr}, v{vKr}")
        W("s_mov_b32 s44, 32")
        e.label("L_fb1")
        scores()
        for i in range(0, 32, 2):
            W(f"v_max3_f32 v{vM}, v{vM}, v{X+i}, v{X+i+1}")
        W(f"v_add_u32 v{ka}, 0x800, v{ka}")
        W(f"v_add_u32 v{kr}, 0x100, v{kr}")
        W("s_sub_u32 s44, s44, 1")
        W("s_cmp_lg_u32 s44, 0")
        W("s_cbranch_scc1 L_fb1")
        W(f"v_mov_b32 v{vM+1}, v{vM}")
        W("s_nop 1")
        W(f"v_permlane32_swap_b32 v{vM}, v{vM+1}")
        W("s_nop 1")
        W(f"v_max_f32 v{vM}, v{vM}, v{vM+1}")
        for i in range(16): W(f"v_mov_b32 v{vO+i}, 0")
        W(f"v_mov_b32 v{ka}, v{vKa}")
        W(f"v_mov_b32 v{kr}, v{vKr}")
        W(f"v_mov_b32 v{va}, v{vVa[0]}")
        W(f"v_bfe_u32 v{vd}, v{vLANE}, 4, 1")
        W(f"v_mul_i32_i24 v{vd}, {-16384+8}, v{vd}")
        W("s_mov_b32 s45, 4")
        e.label("L_fb2o")
        W("s_mov_b32 s44, 8")
        e.label("L_fb2")
        VF = vVF[0]
        for g in range(4):
            for s2 in range(2):
                W(f"ds_read_b64_tr_b16 {vr(VF+4*g+2*s2,2)}, v{va} offset:{(16*g+4*s2)*32}")
        scores()
        for i in range(32):
            W(f"v_sub_f32 v{X+i}, v{X+i}, v{vM}")
        for i in range(32):
            W(f"v_exp_f32 v{X+i}, v{X+i}")
        W("s_nop 1")
        for g in range(4):
            W(f"v_smfmac_f32_32x32x32_bf16 {vr(vO,16)}, {vr(VF+4*g,4)}, {vr(X+8*g,8)}, v{vIDX}")
        W("s_nop 7")
        W(f"v_add_u32 v{ka}, 0x800, v{ka}")
        W(f"v_add_u32 v{kr}, 0x100, v{kr}")
        W(f"v_add_u32 v{va}, 0x800, v{va}")
        W("s_sub_u32 s44, s44, 1")
        W("s_cmp_lg_u32 s44, 0")
        W("s_cbranch_scc1 L_fb2")
        W(f"v_add_u32 v{va}, v{vd}, v{va}")
        W("s_sub_u32 s45, s45, 1")
        W("s_cmp_lg_u32 s45, 0")
        W("s_cbranch_scc1 L_fb2o")
        W("s_nop 15")
        W("s_branch L_store")

    def dump_stamps(self):
        if not self.o.stamps: return
        e = self.e
        n = self.nstamp
        W = lambda t: e.raw("    " + t)
        W("s_mov_b64 exec, 1")
        W("s_and_b32 s15, s15, 0xffff")
        W("s_mov_b32 s4, s14"); W("s_mov_b32 s5, s15"); W("s_mov_b32 s6, 0x1000000"); W("s_mov_b32 s7, 0x20000")
        W("s_lshl_b32 s8, s2, 3"); W(f"s_add_u32 s8, s8, s{sW}"); W("s_lshl_b32 s8, s8, 7")
        for i in range(n):
            W(f"s_sub_u32 s9, s{44+2*i}, s44")
            W("v_mov_b32 v1, s9")
            W(f"v_mov_b32 v2, {4*i}")
            W("buffer_store_dword v1, v2, s[4:7], s8 offen")
            W("s_nop 1")
        W("s_waitcnt vmcnt(0)")

    def build(self):
        e = self.e; o = self.o
        self.build_hooks()
        self.prologue()
        for b in range(32):
            self.iteration(b)
            if o.stamps and b in (0, 1, 2, 5, 6, 13, 14, 21, 22, 30):
                self.stamp(f"it{b}")
        e.nop(2)
        self.mm_pv(31, 3)
        self.stamp("loop")
        if o.force_fb:
            e.nop(16)
            e.other("s_branch L_fallback")
        else:
            self.check()
        e.label("L_store")
        self.epilogue("")
        self.stamp("end")
        self.dump_stamps()
        e.label("L_end")
        e.raw("    s_endpgm")
        self.fallback()
        body = e.text()
        src = HEADER
        src += "; Override launch geometry by editing the next line (default: block=256,\n"
        src += f"; @launch grid=(256,1,1) block=(512,1,1) lds={LDS_BYTES}\n"
        src += f""".amdgcn_target "amdgcn-amd-amdhsa--gfx950"
.text
.globl {NAME}_kernel
.p2align 8
.type {NAME}_kernel,@function
{NAME}_kernel:
{body}.section .rodata,"a"
.p2align 6
.amdhsa_kernel {NAME}_kernel
  .amdhsa_next_free_vgpr {vNV}
  .amdhsa_next_free_sgpr 102
  .amdhsa_accum_offset {vNV}
  .amdhsa_group_segment_fixed_size 0
  .amdhsa_kernarg_size 48
  .amdhsa_user_sgpr_count 2
  .amdhsa_user_sgpr_kernarg_segment_ptr 1
  .amdhsa_system_sgpr_workgroup_id_x 1
.end_amdhsa_kernel
"""
        return src

def get_opts(argv=None):
    p = argparse.ArgumentParser()
    p.add_argument("-o", default="cdna_kernels/" + NAME + ".s")
    p.add_argument("--stamps", type=int, default=0)
    p.add_argument("--force_fb", type=int, default=0)
    p.add_argument("--rpos", type=int, default=18)
    p.add_argument("--pv1", type=int, default=22)
    p.add_argument("--pv2", type=int, default=27)
    p.add_argument("--it_c2", type=int, default=0)
    p.add_argument("--it_c3", type=int, default=2)
    p.add_argument("--it_c4", type=int, default=3)
    p.add_argument("--rdpos", default="1,3,5,7,9,11,13,15,17,19,21")
    o = p.parse_args(argv)
    o.rdpos = [int(x) for x in o.rdpos.split(",")]
    return o

if __name__ == "__main__":
    o = get_opts()
    g = Gen(o)
    src = g.build()
    open(o.o, "w").write(src)
    print("instructions:", g.e.nins, "nop states:", g.e.nops, "bytes src:", len(src))
    for l in g.e.log[:40]: print("  ", l)
    if o.stamps: print("stamps:", ",".join(g.stampnames))
```

```python
import sys, os, argparse, struct
sys.path.insert(0, os.path.dirname(os.path.abspath(__file__)))
from asmlib import *

NAME = "standalone__fused_io_aware_attn__prompt"
HEADER = open("cdna_kernels/" + NAME + ".s.ref").read().split("; Override launch")[0]

HEAD_BYTES = 2048 * 36
TENSOR_BYTES = 32 * HEAD_BYTES
BLK = 64 * 36
KM = 0
VM = HEAD_BYTES
ONES = 2 * HEAD_BYTES
FLAG = ONES + 9216
LDS_BYTES = FLAG + 256

vLANE, vQsrc, vDsrc = 1, 2, 3
vKa = [4, 5]; vKr = [6, 7]
vVa = list(range(8, 16))
vIDX, vFlagR, vFlagW, vFlagV = 16, 17, 18, 19
vT = list(range(20, 32))
SB = [32, 64]
vOo, vOe = 96, 112
vKA = [[128, 132], [136, 140]]
vKR = [144, 146]
vQo, vQe, vB2 = 148, 152, 156
vVF = [160, 176]
vQraw = 176
vB2z, vM = 192, 194
vNV = 200

sW = 3
sQ, sK, sV, sOut = 16, 20, 24, 28
sDst = 32
sQoff = 33
sSrc = list(range(34, 43))
sTmp = 44
sFb = 48
sStamp = 52

C_SCALE = 1.4426950408889634 / (18.0 ** 0.5)
def f32bits(x): return struct.unpack("<I", struct.pack("<f", x))[0]

class Gen:
    def __init__(self, opt):
        self.o = opt
        self.e = Emitter()
        self.nstamp = 0
        self.stampnames = []
        self.spins = []

    def stamp(self, name):
        if not self.o.stamps: return
        if self.o.stampsel and name not in self.o.stampsel and name not in ("start", "end"): return
        e = self.e
        i = self.nstamp; self.nstamp += 1
        s = sStamp + 2 * i
        assert s + 1 < 94
        e.wait(lgkm=0)
        e.other(f"s_memtime s[{s}:{s+1}]")
        if name == "start": e.other("s_memrealtime s[96:97]")
        if name == "end": e.other("s_memrealtime s[98:99]")
        e.raw("    s_waitcnt lgkmcnt(0)")
        self.stampnames.append(name)

    def m0_set(self, tens, r):
        base = (KM if tens == "k" else VM) + r * 8192
        self.e.salu(f"s_add_u32 m0, s{sDst}, {base}", sw={"m0"})
    def dma(self, tens, r, tag):
        srd = sK if tens == "k" else sV
        self.e.emit(Ins(f"buffer_load_dwordx4 v{vDsrc}, s[{srd}:{srd+3}], s{sSrc[r]} offen lds", "dma", rd={vDsrc}), tag=tag)

    def rd_k(self, b, t, half):
        d = vKA[b & 1][t] + 2 * half
        off = (b % 16) * BLK + (40 if t == 0 else 0) + 8 * half
        a = vKa[b // 16]
        self.e.emit(Ins(f"ds_read_b64 {vr(d,2)}, v{a} offset:{off}", "ds_read", rd={a}, wr=R(d, 2)))
    def rd_kr(self, b):
        d = vKR[b & 1]; a = vKr[b // 16]
        self.e.emit(Ins(f"ds_read_b32 v{d}, v{a} offset:{(b % 16) * BLK}", "ds_read", rd={a}, wr={d}))
    def rd_v(self, b, g, s2):
        d = vVF[b & 1] + 4 * g + 2 * s2
        t = g >> 1
        off = (b % 4) * BLK + 1152 * (g & 1) + 288 * s2 + (32 if t == 0 else 0)
        a = vVa[b // 4]
        self.e.emit(Ins(f"ds_read_b64_tr_b16 {vr(d,2)}, v{a} offset:{off}", "ds_read", rd={a}, wr=R(d, 2)))
    def mm_main(self, b, t, czero=False):
        D = SB[b & 1] + 16 * t; A = vKA[b & 1][t]; B = vQo if t == 0 else vQe
        if czero:
            self.e.emit(Ins(f"v_mfma_f32_32x32x16_bf16 {vr(D,16)}, {vr(A,4)}, {vr(B,4)}, 0", "mfma",
                            rd=R(A, 4) | R(B, 4), wr=R(D, 16), passes=8))
        else:
            self.e.emit(Ins(f"v_mfma_f32_32x32x16_bf16 {vr(D,16)}, {vr(A,4)}, {vr(B,4)}, {vr(D,16)}", "mfma",
                            rd=R(A, 4) | R(B, 4), wr=R(D, 16), srcc=R(D, 16), passes=8))
    def mm_rem(self, b, czero=True):
        D = SB[b & 1]; A = vKR[b & 1]; B = vB2
        if czero:
            self.e.emit(Ins(f"v_mfma_f32_32x32x4_2b_bf16 {vr(D,32)}, {vr(A,2)}, {vr(B,2)}, 0", "mfma",
                            rd=R(A, 2) | R(B, 2), wr=R(D, 32), passes=16))
        else:
            self.e.emit(Ins(f"v_mfma_f32_32x32x4_2b_bf16 {vr(D,32)}, {vr(A,2)}, {vr(B,2)}, {vr(D,32)}", "mfma",
                            rd=R(A, 2) | R(B, 2), wr=R(D, 32), srcc=R(D, 32), passes=16))
    def mm_pv(self, b, g):
        A = vVF[b & 1] + 4 * g; B = SB[b & 1] + 8 * g
        O = vOo if g < 2 else vOe
        self.e.emit(Ins(f"v_smfmac_f32_32x32x32_bf16 {vr(O,16)}, {vr(A,4)}, {vr(B,8)}, v{vIDX}", "mfma",
                        rd=R(A, 4) | R(B, 8) | {vIDX}, wr=R(O, 16), srcc=R(O, 16), passes=8))
    def ex(self, b, i):
        r = SB[b & 1] + i
        self.e.trans(f"v_exp_f32 v{r}, v{r}", wr={r}, rd={r})

    def post(self, g, tag):
        e = self.e
        e.wait_vm_tag(tag)
        if self.o.sync == "flag":
            e.emit(Ins(f"ds_write_b32 v{vFlagW}, v{vIDX} offset:{32*g}", "ds_write", rd={vFlagW, vIDX}))
    def flag_read(self, g):
        if self.o.sync == "flag":
            self.e.emit(Ins(f"ds_read_b32 v{vFlagV}, v{vFlagR} offset:{32*g}", "ds_read", rd={vFlagR}, wr={vFlagV}))
    def flag_check(self, g):
        e = self.e
        if self.o.sync == "flag":
            e.valu(f"v_cmp_ne_u32 vcc, v{vIDX}, v{vFlagV}", rd={vIDX, vFlagV}, sw={"vcc"})
            self.pending_branch = g
        elif self.o.sync == "bar":
            e.other("s_barrier")
    def flag_branch(self, g):
        e = self.e
        if self.o.sync == "flag":
            e.other(f"s_cbranch_vccnz L_spin{g}")
            e.label(f"L_back{g}")
            self.spins.append(g)

    def prologue(self):
        e = self.e; o = self.o
        t0, t1, t2, t3 = vT[0:4]
        e.salu("s_cmp_ge_u32 s2, 0x100")
        e.other("s_cbranch_scc1 L_end")
        if o.stamps: self.stamp("start")
        for (srd, off) in ((sQ, 0), (sK, 8), (sV, 16), (sOut, 24)):
            e.other(f"s_load_dwordx2 s[{srd}:{srd+1}], s[0:1], {off}")
        if o.stamps:
            e.other("s_load_dwordx2 s[14:15], s[0:1], 40")
        e.valu(f"v_lshrrev_b32 v{t0}, 6, v0", wr={t0}, rd={0})
        e.valu(f"v_and_b32 v{vLANE}, 63, v0", wr={vLANE}, rd={0})
        e.emit(Ins(f"v_readfirstlane_b32 s{sW}, v{t0}", "valu", rd={t0}, sw={f"s{sW}"}))
        e.valu(f"v_and_b32 v{t0}, 31, v{vLANE}", wr={t0}, rd={vLANE})
        e.valu(f"v_lshrrev_b32 v{t1}, 5, v{vLANE}", wr={t1}, rd={vLANE})
        e.valu(f"v_mul_u32_u24 v{t2}, 36, v{t0}", wr={t2}, rd={t0})
        e.valu(f"v_lshl_add_u32 v{vQsrc}, v{t1}, 4, v{t2}", wr={vQsrc}, rd={t1, t2})
        e.valu(f"v_lshlrev_b32 v{vDsrc}, 4, v{vLANE}", wr={vDsrc}, rd={vLANE})
        e.salu("s_and_b32 s12, s2, 7")
        e.salu("s_lshr_b32 s13, s2, 3")
        e.salu("s_lshr_b32 s4, s13, 3")
        e.salu("s_lshl_b32 s12, s12, 2")
        e.salu("s_add_u32 s12, s12, s4")
        e.salu("s_and_b32 s13, s13, 7")
        e.salu(f"s_mul_i32 s12, s12, {HEAD_BYTES}")
        e.salu(f"s_mul_i32 s13, s13, {256*36}")
        e.salu(f"s_mul_i32 s5, s{sW}, 1152", sr={f"s{sW}"})
        e.salu(f"s_lshl_b32 s{sDst}, s{sW}, 10")
        e.salu(f"s_add_u32 s{sQoff}, s13, s5")
        e.salu(f"s_add_u32 s{sQoff}, s{sQoff}, s12")
        if o.rot:
            e.salu(f"s_add_u32 s6, s{sDst}, s13")
        else:
            e.salu(f"s_mov_b32 s6, s{sDst}")
        e.salu(f"s_add_u32 s{sSrc[0]}, s6, s12")
        for srd in (sQ, sK, sV, sOut):
            e.salu(f"s_mov_b32 s{srd+2}, {TENSOR_BYTES}")
            e.salu(f"s_mov_b32 s{srd+3}, 0x20000")
        self.m0_set("k", 0)
        e.raw("    s_waitcnt lgkmcnt(0)")
        e.hist.append(Ins("w", "other"))
        self.stamp("karg")
        e.emit(Ins(f"buffer_load_dwordx4 {vr(vQraw,4)}, v{vQsrc}, s[{sQ}:{sQ+3}], s{sQoff} offen", "vload", rd={vQsrc}, wr=R(vQraw, 4)), tag="q")
        e.emit(Ins(f"buffer_load_dword v{vQraw+4}, v{vQsrc}, s[{sQ}:{sQ+3}], s{sQoff} offen offset:16", "vload", rd={vQsrc}, wr={vQraw + 4}), tag="q")
        self.dma("k", 0, "k0")
        for r in range(1, 9):
            e.salu(f"s_add_u32 s7, s6, {r*8192}")
            if o.rot:
                e.salu(f"s_sub_u32 s8, s7, {HEAD_BYTES}")
                e.salu("s_min_u32 s7, s7, s8")
            e.salu(f"s_add_u32 s{sSrc[r]}, s7, s12")
        self.m0_set("v", 0)
        if o.ordbar: e.other("s_barrier")
        e.valu(f"v_mul_u32_u24 v{t2}, 72, v{t0}", wr={t2}, rd={t0})
        self.dma("v", 0, "v0")
        self.m0_set("k", 1)
        e.valu(f"v_lshl_add_u32 v{vKa[0]}, v{t1}, 4, v{t2}", wr={vKa[0]}, rd={t1, t2})
        self.dma("k", 1, "g1")
        self.m0_set("v", 1)
        e.valu(f"v_add_u32 v{vKa[1]}, {16*BLK}, v{vKa[0]}", wr={vKa[1]}, rd={vKa[0]})
        self.dma("v", 1, "g1")
        e.valu(f"v_lshlrev_b32 v{t3}, 2, v{t1}", wr={t3}, rd={t1})
        e.valu(f"v_sub_u32 v{t3}, v{t2}, v{t3}", wr={t3}, rd={t2, t3})
        e.valu(f"v_add_u32 v{vKr[0]}, 36, v{t3}", wr={vKr[0]}, rd={t3})
        e.valu(f"v_add_u32 v{vKr[1]}, {16*BLK+36}, v{t3}", wr={vKr[1]}, rd={t3})
        a, b2, c2 = vT[4], vT[5], vT[6]
        e.valu(f"v_bfe_u32 v{t0}, v{vLANE}, 2, 2", wr={t0}, rd={vLANE})
        e.valu(f"v_mul_u32_u24 v{t0}, 72, v{t0}", wr={t0}, rd={t0})
        e.valu(f"v_mul_u32_u24 v{t2}, 576, v{t1}", wr={t2}, rd={t1})
        e.valu(f"v_add_u32 v{t0}, v{t0}, v{t2}", wr={t0}, rd={t0, t2})
        e.valu(f"v_and_b32 v{t2}, 3, v{vLANE}", wr={t2}, rd={vLANE})
        e.valu(f"v_bfe_u32 v{t3}, v{vLANE}, 4, 1", wr={t3}, rd={vLANE})
        e.valu(f"v_lshl_add_u32 v{t2}, v{t3}, 2, v{t2}", wr={t2}, rd={t3, t2})
        e.valu(f"v_lshl_add_u32 v{t0}, v{t2}, 3, v{t0}", wr={t0}, rd={t2, t0})
        e.valu(f"v_cmp_lt_u32 vcc, 4, v{t2}", rd={t2}, sw={"vcc"})
        e.valu(f"v_lshlrev_b32 v{a}, 6, v{t1}", wr={a}, rd={t1})
        e.valu(f"v_add_u32 v{a}, {ONES + 40}, v{a}", wr={a}, rd={a})
        for c in range(8):
            e.valu(f"v_add_u32 v{b2}, {VM + c*4*BLK}, v{t0}", wr={b2}, rd={t0})
            e.valu(f"v_cndmask_b32 v{vVa[c]}, v{b2}, v{a}, vcc", wr={vVa[c]}, rd={a, b2}, sr={"vcc"})
        e.valu(f"v_mov_b32 v{vIDX}, 0xdddddddd", wr={vIDX})
        P = vT[8]
        assert P % 4 == 0
        e.valu(f"v_mov_b32 v{P}, 0x3f80", wr={P})
        e.valu(f"v_mov_b32 v{P+1}, 0", wr={P + 1})
        e.valu(f"v_mov_b32 v{P+2}, 0x3f80", wr={P + 2})
        e.valu(f"v_mov_b32 v{P+3}, 0", wr={P + 3})
        e.valu(f"v_add_u32 v{a}, s{sDst}, v{vDsrc}", wr={a}, rd={vDsrc})
        e.valu(f"v_add_u32 v{a}, {ONES}, v{a}", wr={a}, rd={a})
        e.valu(f"v_add_u32 v{b2}, {ONES + 8192}, v{vDsrc}", wr={b2}, rd={vDsrc})
        e.emit(Ins(f"ds_write_b128 v{a}, {vr(P,4)}", "ds_write", rd={a} | R(P, 4)))
        e.emit(Ins(f"ds_write_b128 v{b2}, {vr(P,4)}", "ds_write", rd={b2} | R(P, 4)))
        if o.sync == "flag":
            e.valu(f"v_lshlrev_b32 v{c2}, 2, v{vLANE}", wr={c2}, rd={vLANE})
            e.valu(f"v_add_u32 v{c2}, {FLAG}, v{c2}", wr={c2}, rd={c2})
            e.emit(Ins(f"ds_write_b32 v{c2}, v{P+1}", "ds_write", rd={c2, P + 1}))
            e.valu(f"v_and_b32 v{vFlagR}, 7, v{vLANE}", wr={vFlagR}, rd={vLANE})
            e.valu(f"v_lshlrev_b32 v{vFlagR}, 2, v{vFlagR}", wr={vFlagR}, rd={vFlagR})
            e.valu(f"v_add_u32 v{vFlagR}, {FLAG}, v{vFlagR}", wr={vFlagR}, rd={vFlagR})
            e.salu(f"s_lshl_b32 s7, s{sW}, 2")
            e.salu(f"s_add_u32 s7, s7, {FLAG}")
            e.valu(f"v_mov_b32 v{vFlagW}, s7", wr={vFlagW})
        e.valu(f"v_mov_b32 v{vKR[0]+1}, 0x3f803f80", wr={vKR[0] + 1})
        e.valu(f"v_mov_b32 v{vKR[1]+1}, 0x3f803f80", wr={vKR[1] + 1})
        for i in range(16):
            e.valu(f"v_mov_b32 v{vOo+i}, 0", wr={vOo + i})
            e.valu(f"v_mov_b32 v{vOe+i}, 0", wr={vOe + i})
        e.salu(f"s_mov_b32 s{sTmp+1}, 0x{f32bits(C_SCALE):08x}")
        e.salu(f"s_mov_b32 s{sTmp+2}, 0xffff0000")
        e.valu(f"v_cmp_lt_u32 vcc, 31, v{vLANE}", rd={vLANE}, sw={"vcc"})
        for j in range(5):
            a, b2 = vT[4 + 2 * (j & 1)], vT[5 + 2 * (j & 1)]
            e.valu(f"v_lshlrev_b32 v{a}, 16, v{vQraw+j}", wr={a}, rd={vQraw + j})
            e.valu(f"v_and_b32 v{b2}, s{sTmp+2}, v{vQraw+j}", wr={b2}, rd={vQraw + j})
            e.valu(f"v_mul_f32 v{a}, s{sTmp+1}, v{a}", wr={a}, rd={a})
            e.valu(f"v_mul_f32 v{b2}, s{sTmp+1}, v{b2}", wr={b2}, rd={b2})
            if j < 4: e.valu(f"v_cvt_pk_bf16_f32 v{vQe+j}, v{a}, v{b2}", wr={vQe + j}, rd={a, b2})
            if j > 0: e.valu(f"v_cvt_pk_bf16_f32 v{vQo+j-1}, v{a}, v{b2}", wr={vQo + j - 1}, rd={a, b2})
        e.valu(f"v_cndmask_b32 v{vB2}, v{vQe}, v{vQo+3}, vcc", wr={vB2}, rd={vQe, vQo + 3}, sr={"vcc"})
        self.stamp("qdone")
        e.wait_vm_tag("k0")
        e.wait(lgkm=0)
        e.other("s_barrier")
        self.stamp("B0a")
        self.rd_k(0, 0, 0); self.rd_k(0, 0, 1)
        self.rd_k(0, 1, 0); self.rd_k(0, 1, 1)
        self.rd_kr(0)
        self.rd_kr(1)
        self.mm_main(0, 0, czero=True)
        self.rd_k(1, 0, 0); self.rd_k(1, 0, 1)
        self.mm_main(0, 1, czero=True)
        self.rd_k(1, 1, 0); self.rd_k(1, 1, 1)
        e.wait_vm_tag("v0")
        X = SB[0]
        m0r, m1r = vT[0], vT[1]
        e.valu(f"v_max3_f32 v{m0r}, v{X}, v{X+1}, v{X+2}", wr={m0r}, rd=R(X, 3))
        e.valu(f"v_max3_f32 v{m1r}, v{X+3}, v{X+4}, v{X+5}", wr={m1r}, rd=R(X + 3, 3))
        e.other("s_barrier")
        e.valu(f"v_max3_f32 v{m0r}, v{m0r}, v{X+6}, v{X+7}", wr={m0r}, rd=R(X + 6, 2) | {m0r})
        e.valu(f"v_max3_f32 v{m1r}, v{m1r}, v{X+8}, v{X+9}", wr={m1r}, rd=R(X + 8, 2) | {m1r})
        self.rd_v(0, 0, 0); self.rd_v(0, 0, 1)
        e.valu(f"v_max3_f32 v{m0r}, v{m0r}, v{X+10}, v{X+11}", wr={m0r}, rd=R(X + 10, 2) | {m0r})
        e.valu(f"v_max3_f32 v{m1r}, v{m1r}, v{X+12}, v{X+13}", wr={m1r}, rd=R(X + 12, 2) | {m1r})
        self.rd_v(0, 1, 0); self.rd_v(0, 1, 1)
        e.valu(f"v_max3_f32 v{m0r}, v{m0r}, v{X+14}, v{X+15}", wr={m0r}, rd=R(X + 14, 2) | {m0r})
        e.valu(f"v_max_f32 v{m0r}, v{m0r}, v{m1r}", wr={m0r}, rd={m0r, m1r})
        e.valu(f"v_mov_b32 v{m1r}, v{m0r}", wr={m1r}, rd={m0r})
        self.rd_v(0, 2, 0); self.rd_v(0, 2, 1)
        e.emit(Ins(f"v_permlane32_swap_b32 v{m0r}, v{m1r}", "perm", rd={m0r, m1r}, wr={m0r, m1r}))
        self.rd_v(0, 3, 0); self.rd_v(0, 3, 1)
        e.valu(f"v_max_f32 v{m0r}, v{m0r}, v{m1r}", wr={m0r}, rd={m0r, m1r})
        e.valu(f"v_cvt_pk_bf16_f32 v{m1r}, -v{m0r}, -v{m0r}", wr={m1r}, rd={m0r})
        e.valu(f"v_lshlrev_b32 v{m1r}, 16, v{m1r}", wr={m1r}, rd={m1r})
        e.valu(f"v_add_f32 v{m1r}, v{m0r}, v{m1r}", wr={m1r}, rd={m0r, m1r})
        e.valu(f"v_cvt_pk_bf16_f32 v{vB2+1}, -v{m0r}, -v{m1r}", wr={vB2 + 1}, rd={m0r, m1r})
        self.mm_rem(0, czero=False)
        self.stamp("prol")

    def iteration(self, b, NB=32):
        e = self.e; o = self.o
        nxt = b + 1 < NB
        act = {i: [] for i in range(33)}
        def at(i, fn): act[i].append(fn)
        mp = o.mpos
        if b > 0: at(mp[0], lambda: self.mm_pv(b - 1, 3))
        if nxt: at(mp[1], lambda: self.mm_rem(b + 1))
        at(mp[2], lambda: self.mm_pv(b, 0))
        at(mp[3], lambda: self.mm_pv(b, 1))
        if nxt: at(mp[4], lambda: self.mm_main(b + 1, 0))
        if nxt: at(mp[5], lambda: self.mm_main(b + 1, 1))
        at(mp[6], lambda: self.mm_pv(b, 2))
        for (pos, fn) in self.hooks_pre.get(b, []): at(pos, fn)
        rds = []
        k2 = b + 2 < NB
        names = ["kr", "v00", "v01", "v10", "v11", "k00", "k01", "k10", "k11", "v20", "v21", "v30", "v31"]
        fns = {
            "kr": (lambda: self.rd_kr(b + 2)) if k2 else None,
            "k00": (lambda: self.rd_k(b + 2, 0, 0)) if k2 else None,
            "k01": (lambda: self.rd_k(b + 2, 0, 1)) if k2 else None,
            "k10": (lambda: self.rd_k(b + 2, 1, 0)) if k2 else None,
            "k11": (lambda: self.rd_k(b + 2, 1, 1)) if k2 else None,
        }
        for g in range(4):
            for s2 in range(2):
                fns[f"v{g}{s2}"] = (lambda g=g, s2=s2: self.rd_v(b + 1, g, s2)) if nxt else None
        for nm, pos in zip(names, o.rdpos):
            if fns[nm] is not None and not (o.nolds and b >= 1): at(pos, fns[nm])
        for (pos, fn) in self.hooks.get(b, []): at(pos, fn)
        for (pos, keep) in o.waits:
            at(pos, lambda keep=keep: e.wait(lgkm=keep))
        for i in range(32):
            for fn in act[i]: fn()
            self.ex(b, i)
        for fn in act[32]: fn()

    def build_hooks(self):
        o = self.o; e = self.e
        H = {}; HP = {}
        def add(b, pos, fn): H.setdefault(b, []).append((pos, fn))
        def addp(b, pos, fn): HP.setdefault(b, []).append((pos, fn))
        sched = o.dsched
        grp = o.groups
        tagof = {}
        for gi, (rounds, pit, cit) in enumerate(grp):
            for r in rounds: tagof[r] = f"g{gi+1}"
        if not o.nodma:
            for r in range(2, 9):
                itk, itv = sched[r - 2]
                pk = o.dpos[0]; pv = o.dpos[1] if itk == itv else o.dpos[0]
                add(itk, pk - 1, lambda r=r: self.m0_set("k", r))
                add(itk, pk, lambda r=r: self.dma("k", r, tagof[r]))
                add(itv, pv - 1, lambda r=r: self.m0_set("v", r))
                add(itv, pv, lambda r=r: self.dma("v", r, tagof[r]))
        for gi, (rounds, pit, cit) in enumerate(grp):
            g = gi + 1
            if o.sync == "none": continue
            if o.sync == "flag":
                add(pit, o.ppos, lambda g=g: self.post(g, f"g{g}"))
                add(cit - 1, o.fpos, lambda g=g: self.flag_read(g))
                addp(cit, 0, lambda g=g: self.flag_check(g))
                addp(cit, 1, lambda g=g: self.flag_branch(g))
            else:
                def bar(g=g):
                    e.wait_vm_tag(f"g{g}")
                    e.other("s_barrier")
                addp(cit, 0, bar)
        self.hooks = H; self.hooks_pre = HP

    def combine(self):
        e = self.e
        E, D = vOe, vOo
        e.valu(f"v_cmp_lt_u32 vcc, 31, v{vLANE}", rd={vLANE}, sw={"vcc"})
        for k in range(2):
            e.emit(Ins(f"v_permlane32_swap_b32 v{D+k}, v{D+4+k}", "perm", rd={D + k, D + 4 + k}, wr={D + k, D + 4 + k}))
        for k in range(2):
            e.emit(Ins(f"v_permlane32_swap_b32 v{D+4+k}, v{D+8+k}", "perm", rd={D + 4 + k, D + 8 + k}, wr={D + 4 + k, D + 8 + k}))
        for k in range(2):
            e.valu(f"v_add_f32 v{E+k}, v{E+k}, v{D+2+k}", wr={E + k}, rd={E + k, D + 2 + k})
            e.valu(f"v_add_f32 v{E+4+k}, v{E+4+k}, v{D+6+k}", wr={E + 4 + k}, rd={E + 4 + k, D + 6 + k})
            e.valu(f"v_add_f32 v{E+8+k}, v{E+8+k}, v{D+10+k}", wr={E + 8 + k}, rd={E + 8 + k, D + 10 + k})
        e.valu(f"v_add_f32 v{E+12}, v{E+12}, v{D+12}", wr={E + 12}, rd={E + 12, D + 12})
        for k in range(2):
            a, b2 = vT[2 * k], vT[2 * k + 1]
            e.valu(f"v_cndmask_b32 v{a}, v{D+4+k}, v{D+k}, vcc", wr={a}, rd={D + 4 + k, D + k}, sr={"vcc"})
            e.valu(f"v_cndmask_b32 v{b2}, v{D+8+k}, v{D+4+k}, vcc", wr={b2}, rd={D + 8 + k, D + 4 + k}, sr={"vcc"})
            e.valu(f"v_add_f32 v{E+2+k}, v{E+2+k}, v{a}", wr={E + 2 + k}, rd={E + 2 + k, a})
            e.valu(f"v_add_f32 v{E+6+k}, v{E+6+k}, v{b2}", wr={E + 6 + k}, rd={E + 6 + k, b2})

    def epilogue(self):
        e = self.e
        O = vOe; L = O + 12
        t = vT
        e.trans(f"v_rcp_f32 v{t[0]}, v{L}", wr={t[0]}, rd={L})
        for i in range(10):
            e.valu(f"v_mul_f32 v{O+i}, v{O+i}, v{t[0]}", wr={O + i}, rd={O + i, t[0]})
        P = 24
        for j in range(5):
            e.valu(f"v_cvt_pk_bf16_f32 v{P+j}, v{O+2*j}, v{O+2*j+1}", wr={P + j}, rd={O + 2 * j, O + 2 * j + 1})
        e.emit(Ins(f"v_permlane32_swap_b32 v{P}, v{P+2}", "perm", rd={P, P + 2}, wr={P, P + 2}))
        e.emit(Ins(f"v_permlane32_swap_b32 v{P+1}, v{P+3}", "perm", rd={P + 1, P + 3}, wr={P + 1, P + 3}))
        e.nop(1)
        pol = self.o.stpol
        e.emit(Ins(f"buffer_store_dwordx4 {vr(P,4)}, v{vQsrc}, s[{sOut}:{sOut+3}], s{sQoff} offen{pol}", "vstore", rd=R(P, 4) | {vQsrc}))
        e.salu("s_mov_b64 exec, 0xffffffff")
        e.emit(Ins(f"buffer_store_dword v{P+4}, v{vQsrc}, s[{sOut}:{sOut+3}], s{sQoff} offen offset:32{pol}", "vstore", rd={P + 4, vQsrc}))

    def check(self):
        e = self.e
        O = vOe; L = O + 12
        t = vT
        e.valu(f"v_mul_f32 v{t[0]}, 0, v{O}", wr={t[0]}, rd={O})
        e.valu(f"v_mul_f32 v{t[1]}, 0, v{O+1}", wr={t[1]}, rd={O + 1})
        for i in range(2, 10):
            r = t[i & 1]
            e.valu(f"v_fma_f32 v{r}, v{O+i}, 0, v{r}", wr={r}, rd={O + i, r})
        e.salu(f"s_mov_b32 s{sTmp}, 0x{f32bits(2.0**-60):08x}")
        e.salu(f"s_mov_b32 s{sTmp+1}, 0x{f32bits(2.0**60):08x}")
        e.valu(f"v_add_f32 v{t[0]}, v{t[0]}, v{t[1]}", wr={t[0]}, rd={t[0], t[1]})
        e.valu(f"v_cmp_le_f32 s[4:5], s{sTmp}, v{L}", rd={L}, sw={"s4"})
        e.valu(f"v_cmp_ge_f32 s[6:7], s{sTmp+1}, v{L}", rd={L}, sw={"s6"})
        e.valu(f"v_cmp_eq_f32 vcc, 0, v{t[0]}", rd={t[0]}, sw={"vcc"})
        e.nop(1)
        e.salu("s_and_b64 s[4:5], s[4:5], s[6:7]", sr={"s4", "s6"})
        e.salu("s_and_b64 s[4:5], s[4:5], vcc", sr={"vcc"})
        e.salu("s_cmp_eq_u64 s[4:5], -1")
        if not self.o.nocheck: e.other("s_cbranch_scc0 L_fallback")

    def fallback(self):
        e = self.e
        e.label("L_fallback")
        e.reset_hist()
        A0, A1, KRp = vKA[0][0], vKA[0][1], vKR[0]
        X = SB[0]
        ka, kr, va, vd = vT[2], vT[3], vT[4], vT[5]
        def W(text): e.raw("    " + text)
        W(f"v_mov_b32 v{vB2z}, v{vB2}")
        W(f"v_mov_b32 v{vB2z+1}, 0")
        W(f"v_mov_b32 v{vM}, 0xff800000")
        def scores():
            W(f"ds_read_b64 {vr(A0,2)}, v{ka} offset:40")
            W(f"ds_read_b64 {vr(A0+2,2)}, v{ka} offset:48")
            W(f"ds_read_b64 {vr(A1,2)}, v{ka}")
            W(f"ds_read_b64 {vr(A1+2,2)}, v{ka} offset:8")
            W(f"ds_read_b32 v{KRp}, v{kr}")
            W("s_waitcnt lgkmcnt(0)")
            W(f"v_mfma_f32_32x32x16_bf16 {vr(X,16)}, {vr(A0,4)}, {vr(vQo,4)}, 0")
            W(f"v_mfma_f32_32x32x16_bf16 {vr(X+16,16)}, {vr(A1,4)}, {vr(vQe,4)}, 0")
            W("s_nop 15")
            W(f"v_mfma_f32_32x32x4_2b_bf16 {vr(X,32)}, {vr(KRp,2)}, {vr(vB2z,2)}, {vr(X,32)}")
            W("s_nop 15"); W("s_nop 7")
        W(f"v_mov_b32 v{ka}, v{vKa[0]}")
        W(f"v_mov_b32 v{kr}, v{vKr[0]}")
        W(f"s_mov_b32 s{sFb}, 32")
        e.label("L_fb1")
        scores()
        for i in range(0, 32, 2):
            W(f"v_max3_f32 v{vM}, v{vM}, v{X+i}, v{X+i+1}")
        W(f"v_add_u32 v{ka}, {BLK}, v{ka}")
        W(f"v_add_u32 v{kr}, {BLK}, v{kr}")
        W(f"s_sub_u32 s{sFb}, s{sFb}, 1")
        W(f"s_cmp_lg_u32 s{sFb}, 0")
        W("s_cbranch_scc1 L_fb1")
        W(f"v_mov_b32 v{vM+1}, v{vM}")
        W("s_nop 1")
        W(f"v_permlane32_swap_b32 v{vM}, v{vM+1}")
        W("s_nop 1")
        W(f"v_max_f32 v{vM}, v{vM}, v{vM+1}")
        for i in range(16):
            W(f"v_mov_b32 v{vOo+i}, 0"); W(f"v_mov_b32 v{vOe+i}, 0")
        W(f"v_mov_b32 v{ka}, v{vKa[0]}")
        W(f"v_mov_b32 v{kr}, v{vKr[0]}")
        W(f"v_mov_b32 v{va}, v{vVa[0]}")
        W(f"v_sub_u32 v{vd}, v{vVa[1]}, v{vVa[0]}")
        W(f"v_lshrrev_b32 v{vd}, 2, v{vd}")
        W(f"s_mov_b32 s{sFb}, 32")
        e.label("L_fb2")
        VF = vVF[0]
        for g in range(4):
            for s2 in range(2):
                off = 1152 * (g & 1) + 288 * s2 + (32 if g < 2 else 0)
                W(f"ds_read_b64_tr_b16 {vr(VF+4*g+2*s2,2)}, v{va} offset:{off}")
        scores()
        for i in range(32):
            W(f"v_sub_f32 v{X+i}, v{X+i}, v{vM}")
        for i in range(32):
            W(f"v_exp_f32 v{X+i}, v{X+i}")
        W("s_nop 1")
        for g in range(4):
            O = vOo if g < 2 else vOe
            W(f"v_smfmac_f32_32x32x32_bf16 {vr(O,16)}, {vr(VF+4*g,4)}, {vr(X+8*g,8)}, v{vIDX}")
        W("s_nop 7")
        W(f"v_add_u32 v{ka}, {BLK}, v{ka}")
        W(f"v_add_u32 v{kr}, {BLK}, v{kr}")
        W(f"v_add_u32 v{va}, v{vd}, v{va}")
        W(f"s_sub_u32 s{sFb}, s{sFb}, 1")
        W(f"s_cmp_lg_u32 s{sFb}, 0")
        W("s_cbranch_scc1 L_fb2")
        W("s_nop 15")
        W(f"s_mov_b32 s{sFb+1}, 1")
        W("s_branch L_combine")

    def spinloops(self):
        e = self.e
        for g in self.spins:
            e.label(f"L_spin{g}")
            e.raw(f"    ds_read_b32 v{vFlagV}, v{vFlagR} offset:{32*g}")
            e.raw("    s_waitcnt lgkmcnt(0)")
            e.raw(f"    v_cmp_ne_u32 vcc, v{vIDX}, v{vFlagV}")
            e.raw("    s_nop 1")
            e.raw(f"    s_cbranch_vccnz L_spin{g}")
            e.raw(f"    s_branch L_back{g}")

    def dump_stamps(self):
        if not self.o.stamps: return
        e = self.e
        n = self.nstamp
        W = lambda t: e.raw("    " + t)
        W("s_mov_b64 exec, 1")
        W("s_and_b32 s15, s15, 0xffff")
        W("s_mov_b32 s4, s14"); W("s_mov_b32 s5, s15"); W("s_mov_b32 s6, 0x1000000"); W("s_mov_b32 s7, 0x20000")
        W("s_lshl_b32 s8, s2, 3"); W(f"s_add_u32 s8, s8, s{sW}"); W("s_lshl_b32 s8, s8, 7")
        for i in range(n):
            W(f"s_sub_u32 s9, s{sStamp+2*i}, s{sStamp}")
            W("v_mov_b32 v1, s9")
            W(f"v_mov_b32 v2, {4*i}")
            W("buffer_store_dword v1, v2, s[4:7], s8 offen")
            W("s_nop 1")
        W("s_sub_u32 s9, s98, s96")
        W("v_mov_b32 v1, s9")
        W(f"v_mov_b32 v2, {4*n}")
        W("buffer_store_dword v1, v2, s[4:7], s8 offen")
        W("s_nop 1")
        W("v_mov_b32 v1, s96")
        W(f"v_mov_b32 v2, {4*n+4}")
        W("buffer_store_dword v1, v2, s[4:7], s8 offen")
        W("s_nop 1")
        W("v_mov_b32 v1, s98")
        W(f"v_mov_b32 v2, {4*n+8}")
        W("buffer_store_dword v1, v2, s[4:7], s8 offen")
        W("s_waitcnt vmcnt(0)")
        self.stampnames += ["rt", "rt0", "rt1"]

    def build(self):
        e = self.e; o = self.o
        self.build_hooks()
        self.prologue()
        for b in range(32):
            self.iteration(b)
            if o.stamps and (f"it{b}" in o.stampsel):
                self.stamp(f"it{b}")
        e.nop(2)
        self.mm_pv(31, 3)
        self.stamp("loop")
        e.salu(f"s_mov_b32 s{sFb+1}, 0")
        if o.force_fb:
            e.nop(16)
            e.other("s_branch L_fallback")
        e.label("L_combine")
        self.combine()
        e.salu(f"s_cmp_lg_u32 s{sFb+1}, 0")
        e.other("s_cbranch_scc1 L_store")
        self.check()
        e.label("L_store")
        self.epilogue()
        self.stamp("end")
        self.dump_stamps()
        e.label("L_end")
        e.raw("    s_endpgm")
        self.spinloops()
        self.fallback()
        body = e.text()
        src = HEADER
        src += "; Override launch geometry by editing the next line (default: block=256,\n; grid=ceil(out_elems/256), lds=0). Harness parses it; keep it on one line.\n"
        src += f"; @launch grid=(256,1,1) block=(512,1,1) lds={LDS_BYTES}\n"
        src += f""".amdgcn_target "amdgcn-amd-amdhsa--gfx950"
.text
.globl {NAME}_kernel
.p2align 8
.type {NAME}_kernel,@function
{NAME}_kernel:
{body}.section .rodata,"a"
.p2align 6
.amdhsa_kernel {NAME}_kernel
  .amdhsa_next_free_vgpr {vNV}
  .amdhsa_next_free_sgpr 102
  .amdhsa_accum_offset {vNV}
  .amdhsa_group_segment_fixed_size 0
  .amdhsa_kernarg_size 48
  .amdhsa_user_sgpr_count 2
  .amdhsa_user_sgpr_kernarg_segment_ptr 1
  .amdhsa_system_sgpr_workgroup_id_x 1
.end_amdhsa_kernel
"""
        return src

def get_opts(argv=None):
    p = argparse.ArgumentParser()
    p.add_argument("-o", default="cdna_kernels/" + NAME + ".s")
    p.add_argument("--stamps", type=int, default=0)
    p.add_argument("--stampsel", default="")
    p.add_argument("--force_fb", type=int, default=0)
    p.add_argument("--nocheck", type=int, default=0)
    p.add_argument("--rot", type=int, default=1)
    p.add_argument("--ordbar", type=int, default=1)
    p.add_argument("--sync", default="flag")
    p.add_argument("--nodma", type=int, default=0)
    p.add_argument("--nolds", type=int, default=0)
    p.add_argument("--mpos", default="2,4,12,18,22,26,29")
    p.add_argument("--rdpos", default="2,2,4,4,12,12,18,18,22,22,26,26,29")
    p.add_argument("--waits", default="4:2,22:9")
    p.add_argument("--dsched", default="0:0,1:2,3:4,5:6,7:8,9:10,11:12")
    p.add_argument("--dpos", default="23,27")
    p.add_argument("--groups", default="1;0;1/2;3;5/3,4;6;8/5,6;10;15/7,8;14;22")
    p.add_argument("--ppos", type=int, default=30)
    p.add_argument("--fpos", type=int, default=29)
    p.add_argument("--stpol", default="")
    o = p.parse_args(argv)
    o.stampsel = [x for x in o.stampsel.split(",") if x]
    o.rdpos = [int(x) for x in o.rdpos.split(",")]
    o.mpos = [int(x) for x in o.mpos.split(",")]
    o.dpos = [int(x) for x in o.dpos.split(",")]
    o.waits = [tuple(int(y) for y in x.split(":")) for x in o.waits.split(",") if x]
    o.dsched = [tuple(int(y) for y in x.split(":")) for x in o.dsched.split(",")]
    o.groups = [([int(r) for r in g.split(";")[0].split(",")], int(g.split(";")[1]), int(g.split(";")[2])) for g in o.groups.split("/")]
    if o.stpol: o.stpol = " " + o.stpol.replace("+", " ")
    return o

if __name__ == "__main__":
    o = get_opts()
    g = Gen(o)
    src = g.build()
    open(o.o, "w").write(src)
    print("instructions:", g.e.nins, "nop states:", g.e.nops, "bytes src:", len(src))
    for l in g.e.log[:60]: print("  ", l)
    if o.stamps: print("stamps:", ",".join(g.stampnames))
```

```python
import sys, os, argparse, struct
sys.path.insert(0, os.path.dirname(os.path.abspath(__file__)))
from asmlib import *

NAME = "standalone__fused_io_aware_attn__prompt"
HEADER = open("cdna_kernels/" + NAME + ".s.ref").read().split("; Override launch")[0]

HEAD_BYTES = 2048 * 36
TENSOR_BYTES = 32 * HEAD_BYTES
BLK = 64 * 36
KM = 0
VM = HEAD_BYTES
ONES = 2 * HEAD_BYTES
FLAG = ONES + 9216
LDS_BYTES = FLAG + 256

vLANE, vQsrc, vDsrc = 1, 2, 3
vKa = [4, 5]; vKr = [6, 7]
vVa = list(range(8, 16))
vIDX, vFlagR, vFlagW, vFlagV = 16, 17, 18, 19
vT = list(range(20, 32))
SB = [32, 64]
vOo, vOe = 96, 112
vKA = [[128, 132], [136, 140]]
vKR = [144, 146]
vQo, vQe, vB2 = 148, 152, 156
vVF = [160, 176]
vQraw = 176
vB2z, vM = 192, 194
vNV = 200

sW = 3
sQ, sK, sV, sOut = 16, 20, 24, 28
sDst = 32
sQoff = 33
sSrc = list(range(34, 43))
sTmp = 44
sFb = 48
sStamp = 52

C_SCALE = 1.4426950408889634 / (18.0 ** 0.5)
def f32bits(x): return struct.unpack("<I", struct.pack("<f", x))[0]

class Gen:
    def __init__(self, opt):
        self.o = opt
        self.e = Emitter()
        self.nstamp = 0
        self.stampnames = []
        self.spins = []

    def stamp(self, name):
        if not self.o.stamps: return
        if self.o.stampsel and name not in self.o.stampsel and name not in ("start", "end"): return
        e = self.e
        i = self.nstamp; self.nstamp += 1
        s = sStamp + 2 * i
        assert s + 1 < 94
        e.wait(lgkm=0)
        e.other(f"s_memtime s[{s}:{s+1}]")
        if name == "start": e.other("s_memrealtime s[96:97]")
        if name == "end": e.other("s_memrealtime s[98:99]")
        e.raw("    s_waitcnt lgkmcnt(0)")
        self.stampnames.append(name)

    def m0_set(self, tens, r):
        base = (KM if tens == "k" else VM) + r * 8192
        self.e.salu(f"s_add_u32 m0, s{sDst}, {base}", sw={"m0"})
    def dma(self, tens, r, tag):
        srd = sK if tens == "k" else sV
        self.e.emit(Ins(f"buffer_load_dwordx4 v{vDsrc}, s[{srd}:{srd+3}], s{sSrc[r]} offen lds", "dma", rd={vDsrc}), tag=tag)

    def rd_k(self, b, t, half):
        d = vKA[b & 1][t] + 2 * half
        off = (b % 16) * BLK + (40 if t == 0 else 0) + 8 * half
        a = vKa[b // 16]
        self.e.emit(Ins(f"ds_read_b64 {vr(d,2)}, v{a} offset:{off}", "ds_read", rd={a}, wr=R(d, 2)))
    def rd_kr(self, b):
        d = vKR[b & 1]; a = vKr[b // 16]
        self.e.emit(Ins(f"ds_read_b32 v{d}, v{a} offset:{(b % 16) * BLK}", "ds_read", rd={a}, wr={d}))
    def rd_v(self, b, g, s2):
        d = vVF[b & 1] + 4 * g + 2 * s2
        t = g >> 1
        off = (b % 4) * BLK + 1152 * (g & 1) + 288 * s2 + (32 if t == 0 else 0)
        a = vVa[b // 4]
        self.e.emit(Ins(f"ds_read_b64_tr_b16 {vr(d,2)}, v{a} offset:{off}", "ds_read", rd={a}, wr=R(d, 2)))
    def mm_main(self, b, t, czero=False):
        D = SB[b & 1] + 16 * t; A = vKA[b & 1][t]; B = vQo if t == 0 else vQe
        if czero:
            self.e.emit(Ins(f"v_mfma_f32_32x32x16_bf16 {vr(D,16)}, {vr(A,4)}, {vr(B,4)}, 0", "mfma",
                            rd=R(A, 4) | R(B, 4), wr=R(D, 16), passes=8))
        else:
            self.e.emit(Ins(f"v_mfma_f32_32x32x16_bf16 {vr(D,16)}, {vr(A,4)}, {vr(B,4)}, {vr(D,16)}", "mfma",
                            rd=R(A, 4) | R(B, 4), wr=R(D, 16), srcc=R(D, 16), passes=8))
    def mm_rem(self, b, czero=True):
        D = SB[b & 1]; A = vKR[b & 1]; B = vB2
        if czero:
            self.e.emit(Ins(f"v_mfma_f32_32x32x4_2b_bf16 {vr(D,32)}, {vr(A,2)}, {vr(B,2)}, 0", "mfma",
                            rd=R(A, 2) | R(B, 2), wr=R(D, 32), passes=16))
        else:
            self.e.emit(Ins(f"v_mfma_f32_32x32x4_2b_bf16 {vr(D,32)}, {vr(A,2)}, {vr(B,2)}, {vr(D,32)}", "mfma",
                            rd=R(A, 2) | R(B, 2), wr=R(D, 32), srcc=R(D, 32), passes=16))
    def mm_pv(self, b, g):
        A = vVF[b & 1] + 4 * g; B = SB[b & 1] + 8 * g
        O = vOo if g < 2 else vOe
        self.e.emit(Ins(f"v_smfmac_f32_32x32x32_bf16 {vr(O,16)}, {vr(A,4)}, {vr(B,8)}, v{vIDX}", "mfma",
                        rd=R(A, 4) | R(B, 8) | {vIDX}, wr=R(O, 16), srcc=R(O, 16), passes=8))
    def ex(self, b, i):
        r = SB[b & 1] + i
        self.e.trans(f"v_exp_f32 v{r}, v{r}", wr={r}, rd={r})

    def post(self, g, tag):
        e = self.e
        e.wait_vm_tag(tag)
        if self.o.sync == "flag":
            e.emit(Ins(f"ds_write_b32 v{vFlagW}, v{vIDX} offset:{32*g}", "ds_write", rd={vFlagW, vIDX}))
    def flag_read(self, g):
        if self.o.sync == "flag":
            self.e.emit(Ins(f"ds_read_b32 v{vFlagV}, v{vFlagR} offset:{32*g}", "ds_read", rd={vFlagR}, wr={vFlagV}))
    def flag_check(self, g):
        e = self.e
        if self.o.sync == "flag":
            e.valu(f"v_cmp_ne_u32 vcc, v{vIDX}, v{vFlagV}", rd={vIDX, vFlagV}, sw={"vcc"})
            self.pending_branch = g
        elif self.o.sync == "bar":
            e.other("s_barrier")
    def flag_branch(self, g):
        e = self.e
        if self.o.sync == "flag":
            e.other(f"s_cbranch_vccnz L_spin{g}")
            e.label(f"L_back{g}")
            self.spins.append(g)

    def prologue(self):
        e = self.e; o = self.o
        t0, t1, t2, t3 = vT[0:4]
        e.salu("s_cmp_ge_u32 s2, 0x100")
        e.other("s_cbranch_scc1 L_end")
        if o.stamps: self.stamp("start")
        for (srd, off) in ((sQ, 0), (sK, 8), (sV, 16), (sOut, 24)):
            e.other(f"s_load_dwordx2 s[{srd}:{srd+1}], s[0:1], {off}")
        if o.stamps:
            e.other("s_load_dwordx2 s[14:15], s[0:1], 40")
        if o.repeat > 1:
            e.salu(f"s_mov_b32 s50, {o.repeat}")
            e.label("L_again")
        e.valu(f"v_lshrrev_b32 v{t0}, 6, v0", wr={t0}, rd={0})
        e.valu(f"v_and_b32 v{vLANE}, 63, v0", wr={vLANE}, rd={0})
        e.emit(Ins(f"v_readfirstlane_b32 s{sW}, v{t0}", "valu", rd={t0}, sw={f"s{sW}"}))
        e.valu(f"v_and_b32 v{t0}, 31, v{vLANE}", wr={t0}, rd={vLANE})
        e.valu(f"v_lshrrev_b32 v{t1}, 5, v{vLANE}", wr={t1}, rd={vLANE})
        e.valu(f"v_mul_u32_u24 v{t2}, 36, v{t0}", wr={t2}, rd={t0})
        e.valu(f"v_lshl_add_u32 v{vQsrc}, v{t1}, 4, v{t2}", wr={vQsrc}, rd={t1, t2})
        e.valu(f"v_lshlrev_b32 v{vDsrc}, 4, v{vLANE}", wr={vDsrc}, rd={vLANE})
        e.salu("s_and_b32 s12, s2, 7")
        e.salu("s_lshr_b32 s13, s2, 3")
        e.salu("s_lshr_b32 s4, s13, 3")
        e.salu("s_lshl_b32 s12, s12, 2")
        e.salu("s_add_u32 s12, s12, s4")
        e.salu("s_and_b32 s13, s13, 7")
        e.salu(f"s_mul_i32 s12, s12, {HEAD_BYTES}")
        e.salu(f"s_mul_i32 s13, s13, {256*36}")
        e.salu(f"s_mul_i32 s5, s{sW}, 1152", sr={f"s{sW}"})
        e.salu(f"s_lshl_b32 s{sDst}, s{sW}, 10")
        e.salu(f"s_add_u32 s{sQoff}, s13, s5")
        e.salu(f"s_add_u32 s{sQoff}, s{sQoff}, s12")
        if o.rot:
            e.salu(f"s_add_u32 s6, s{sDst}, s13")
        else:
            e.salu(f"s_mov_b32 s6, s{sDst}")
        e.salu(f"s_add_u32 s{sSrc[0]}, s6, s12")
        for srd in (sQ, sK, sV, sOut):
            e.salu(f"s_mov_b32 s{srd+2}, {TENSOR_BYTES}")
            e.salu(f"s_mov_b32 s{srd+3}, 0x20000")
        self.m0_set("k", 0)
        e.raw("    s_waitcnt lgkmcnt(0)")
        e.hist.append(Ins("w", "other"))
        self.stamp("karg")
        e.emit(Ins(f"buffer_load_dwordx4 {vr(vQraw,4)}, v{vQsrc}, s[{sQ}:{sQ+3}], s{sQoff} offen", "vload", rd={vQsrc}, wr=R(vQraw, 4)), tag="q")
        e.emit(Ins(f"buffer_load_dword v{vQraw+4}, v{vQsrc}, s[{sQ}:{sQ+3}], s{sQoff} offen offset:16", "vload", rd={vQsrc}, wr={vQraw + 4}), tag="q")
        self.dma("k", 0, "k0")
        for r in range(1, 9):
            e.salu(f"s_add_u32 s7, s6, {r*8192}")
            if o.rot:
                e.salu(f"s_sub_u32 s8, s7, {HEAD_BYTES}")
                e.salu("s_min_u32 s7, s7, s8")
            e.salu(f"s_add_u32 s{sSrc[r]}, s7, s12")
        self.m0_set("v", 0)
        if o.ordbar: e.other("s_barrier")
        e.valu(f"v_mul_u32_u24 v{t2}, 72, v{t0}", wr={t2}, rd={t0})
        self.dma("v", 0, "v0")
        self.m0_set("k", 1)
        e.valu(f"v_lshl_add_u32 v{vKa[0]}, v{t1}, 4, v{t2}", wr={vKa[0]}, rd={t1, t2})
        self.dma("k", 1, "g1")
        self.m0_set("v", 1)
        e.valu(f"v_add_u32 v{vKa[1]}, {16*BLK}, v{vKa[0]}", wr={vKa[1]}, rd={vKa[0]})
        self.dma("v", 1, "g1")
        e.valu(f"v_lshlrev_b32 v{t3}, 2, v{t1}", wr={t3}, rd={t1})
        e.valu(f"v_sub_u32 v{t3}, v{t2}, v{t3}", wr={t3}, rd={t2, t3})
        e.valu(f"v_add_u32 v{vKr[0]}, 36, v{t3}", wr={vKr[0]}, rd={t3})
        e.valu(f"v_add_u32 v{vKr[1]}, {16*BLK+36}, v{t3}", wr={vKr[1]}, rd={t3})
        a, b2, c2 = vT[4], vT[5], vT[6]
        e.valu(f"v_bfe_u32 v{t0}, v{vLANE}, 2, 2", wr={t0}, rd={vLANE})
        e.valu(f"v_mul_u32_u24 v{t0}, 72, v{t0}", wr={t0}, rd={t0})
        e.valu(f"v_mul_u32_u24 v{t2}, 576, v{t1}", wr={t2}, rd={t1})
        e.valu(f"v_add_u32 v{t0}, v{t0}, v{t2}", wr={t0}, rd={t0, t2})
        e.valu(f"v_and_b32 v{t2}, 3, v{vLANE}", wr={t2}, rd={vLANE})
        e.valu(f"v_bfe_u32 v{t3}, v{vLANE}, 4, 1", wr={t3}, rd={vLANE})
        e.valu(f"v_lshl_add_u32 v{t2}, v{t3}, 2, v{t2}", wr={t2}, rd={t3, t2})
        e.valu(f"v_lshl_add_u32 v{t0}, v{t2}, 3, v{t0}", wr={t0}, rd={t2, t0})
        e.valu(f"v_cmp_lt_u32 vcc, 4, v{t2}", rd={t2}, sw={"vcc"})
        e.valu(f"v_lshlrev_b32 v{a}, 6, v{t1}", wr={a}, rd={t1})
        e.valu(f"v_add_u32 v{a}, {ONES + 40}, v{a}", wr={a}, rd={a})
        for c in range(8):
            e.valu(f"v_add_u32 v{b2}, {VM + c*4*BLK}, v{t0}", wr={b2}, rd={t0})
            e.valu(f"v_cndmask_b32 v{vVa[c]}, v{b2}, v{a}, vcc", wr={vVa[c]}, rd={a, b2}, sr={"vcc"})
        e.valu(f"v_mov_b32 v{vIDX}, 0xdddddddd", wr={vIDX})
        P = vT[8]
        assert P % 4 == 0
        e.valu(f"v_mov_b32 v{P}, 0x3f80", wr={P})
        e.valu(f"v_mov_b32 v{P+1}, 0", wr={P + 1})
        e.valu(f"v_mov_b32 v{P+2}, 0x3f80", wr={P + 2})
        e.valu(f"v_mov_b32 v{P+3}, 0", wr={P + 3})
        e.valu(f"v_add_u32 v{a}, s{sDst}, v{vDsrc}", wr={a}, rd={vDsrc})
        e.valu(f"v_add_u32 v{a}, {ONES}, v{a}", wr={a}, rd={a})
        e.valu(f"v_add_u32 v{b2}, {ONES + 8192}, v{vDsrc}", wr={b2}, rd={vDsrc})
        e.emit(Ins(f"ds_write_b128 v{a}, {vr(P,4)}", "ds_write", rd={a} | R(P, 4)))
        e.emit(Ins(f"ds_write_b128 v{b2}, {vr(P,4)}", "ds_write", rd={b2} | R(P, 4)))
        if o.sync == "flag":
            e.valu(f"v_lshlrev_b32 v{c2}, 2, v{vLANE}", wr={c2}, rd={vLANE})
            e.valu(f"v_add_u32 v{c2}, {FLAG}, v{c2}", wr={c2}, rd={c2})
            e.emit(Ins(f"ds_write_b32 v{c2}, v{P+1}", "ds_write", rd={c2, P + 1}))
            e.valu(f"v_and_b32 v{vFlagR}, 7, v{vLANE}", wr={vFlagR}, rd={vLANE})
            e.valu(f"v_lshlrev_b32 v{vFlagR}, 2, v{vFlagR}", wr={vFlagR}, rd={vFlagR})
            e.valu(f"v_add_u32 v{vFlagR}, {FLAG}, v{vFlagR}", wr={vFlagR}, rd={vFlagR})
            e.salu(f"s_lshl_b32 s7, s{sW}, 2")
            e.salu(f"s_add_u32 s7, s7, {FLAG}")
            e.valu(f"v_mov_b32 v{vFlagW}, s7", wr={vFlagW})
        e.valu(f"v_mov_b32 v{vKR[0]+1}, 0x3f803f80", wr={vKR[0] + 1})
        e.valu(f"v_mov_b32 v{vKR[1]+1}, 0x3f803f80", wr={vKR[1] + 1})
        for i in range(16):
            e.valu(f"v_mov_b32 v{vOo+i}, 0", wr={vOo + i})
            e.valu(f"v_mov_b32 v{vOe+i}, 0", wr={vOe + i})
        e.salu(f"s_mov_b32 s{sTmp+1}, 0x{f32bits(C_SCALE):08x}")
        e.salu(f"s_mov_b32 s{sTmp+2}, 0xffff0000")
        e.valu(f"v_cmp_lt_u32 vcc, 31, v{vLANE}", rd={vLANE}, sw={"vcc"})
        for j in range(5):
            a, b2 = vT[4 + 2 * (j & 1)], vT[5 + 2 * (j & 1)]
            e.valu(f"v_lshlrev_b32 v{a}, 16, v{vQraw+j}", wr={a}, rd={vQraw + j})
            e.valu(f"v_and_b32 v{b2}, s{sTmp+2}, v{vQraw+j}", wr={b2}, rd={vQraw + j})
            e.valu(f"v_mul_f32 v{a}, s{sTmp+1}, v{a}", wr={a}, rd={a})
            e.valu(f"v_mul_f32 v{b2}, s{sTmp+1}, v{b2}", wr={b2}, rd={b2})
            if j < 4: e.valu(f"v_cvt_pk_bf16_f32 v{vQe+j}, v{a}, v{b2}", wr={vQe + j}, rd={a, b2})
            if j > 0: e.valu(f"v_cvt_pk_bf16_f32 v{vQo+j-1}, v{a}, v{b2}", wr={vQo + j - 1}, rd={a, b2})
        e.valu(f"v_cndmask_b32 v{vB2}, v{vQe}, v{vQo+3}, vcc", wr={vB2}, rd={vQe, vQo + 3}, sr={"vcc"})
        self.stamp("qdone")
        e.wait_vm_tag("k0")
        e.wait(lgkm=0)
        e.other("s_barrier")
        self.stamp("B0a")
        self.rd_k(0, 0, 0); self.rd_k(0, 0, 1)
        self.rd_k(0, 1, 0); self.rd_k(0, 1, 1)
        self.rd_kr(0)
        self.rd_kr(1)
        self.mm_main(0, 0, czero=True)
        self.rd_k(1, 0, 0); self.rd_k(1, 0, 1)
        self.mm_main(0, 1, czero=True)
        self.rd_k(1, 1, 0); self.rd_k(1, 1, 1)
        e.wait_vm_tag("v0")
        X = SB[0]
        m0r, m1r = vT[0], vT[1]
        e.valu(f"v_max3_f32 v{m0r}, v{X}, v{X+1}, v{X+2}", wr={m0r}, rd=R(X, 3))
        e.valu(f"v_max3_f32 v{m1r}, v{X+3}, v{X+4}, v{X+5}", wr={m1r}, rd=R(X + 3, 3))
        e.other("s_barrier")
        e.valu(f"v_max3_f32 v{m0r}, v{m0r}, v{X+6}, v{X+7}", wr={m0r}, rd=R(X + 6, 2) | {m0r})
        e.valu(f"v_max3_f32 v{m1r}, v{m1r}, v{X+8}, v{X+9}", wr={m1r}, rd=R(X + 8, 2) | {m1r})
        self.rd_v(0, 0, 0); self.rd_v(0, 0, 1)
        e.valu(f"v_max3_f32 v{m0r}, v{m0r}, v{X+10}, v{X+11}", wr={m0r}, rd=R(X + 10, 2) | {m0r})
        e.valu(f"v_max3_f32 v{m1r}, v{m1r}, v{X+12}, v{X+13}", wr={m1r}, rd=R(X + 12, 2) | {m1r})
        self.rd_v(0, 1, 0); self.rd_v(0, 1, 1)
        e.valu(f"v_max3_f32 v{m0r}, v{m0r}, v{X+14}, v{X+15}", wr={m0r}, rd=R(X + 14, 2) | {m0r})
        e.valu(f"v_max_f32 v{m0r}, v{m0r}, v{m1r}", wr={m0r}, rd={m0r, m1r})
        e.valu(f"v_mov_b32 v{m1r}, v{m0r}", wr={m1r}, rd={m0r})
        self.rd_v(0, 2, 0); self.rd_v(0, 2, 1)
        e.emit(Ins(f"v_permlane32_swap_b32 v{m0r}, v{m1r}", "perm", rd={m0r, m1r}, wr={m0r, m1r}))
        self.rd_v(0, 3, 0); self.rd_v(0, 3, 1)
        e.valu(f"v_max_f32 v{m0r}, v{m0r}, v{m1r}", wr={m0r}, rd={m0r, m1r})
        e.valu(f"v_cvt_pk_bf16_f32 v{m1r}, -v{m0r}, -v{m0r}", wr={m1r}, rd={m0r})
        e.valu(f"v_lshlrev_b32 v{m1r}, 16, v{m1r}", wr={m1r}, rd={m1r})
        e.valu(f"v_add_f32 v{m1r}, v{m0r}, v{m1r}", wr={m1r}, rd={m0r, m1r})
        e.valu(f"v_cvt_pk_bf16_f32 v{vB2+1}, -v{m0r}, -v{m1r}", wr={vB2 + 1}, rd={m0r, m1r})
        self.mm_rem(0, czero=False)
        self.stamp("prol")

    def iteration(self, b, NB=32):
        e = self.e; o = self.o
        nxt = b + 1 < NB
        act = {i: [] for i in range(33)}
        def at(i, fn): act[i].append(fn)
        mp = o.mpos
        if b > 0: at(mp[0], lambda: self.mm_pv(b - 1, 3))
        if nxt: at(mp[1], lambda: self.mm_rem(b + 1))
        at(mp[2], lambda: self.mm_pv(b, 0))
        at(mp[3], lambda: self.mm_pv(b, 1))
        if nxt: at(mp[4], lambda: self.mm_main(b + 1, 0))
        if nxt: at(mp[5], lambda: self.mm_main(b + 1, 1))
        at(mp[6], lambda: self.mm_pv(b, 2))
        for (pos, fn) in self.hooks_pre.get(b, []): at(pos, fn)
        rds = []
        k2 = b + 2 < NB
        names = ["kr", "v00", "v01", "v10", "v11", "k00", "k01", "k10", "k11", "v20", "v21", "v30", "v31"]
        fns = {
            "kr": (lambda: self.rd_kr(b + 2)) if k2 else None,
            "k00": (lambda: self.rd_k(b + 2, 0, 0)) if k2 else None,
            "k01": (lambda: self.rd_k(b + 2, 0, 1)) if k2 else None,
            "k10": (lambda: self.rd_k(b + 2, 1, 0)) if k2 else None,
            "k11": (lambda: self.rd_k(b + 2, 1, 1)) if k2 else None,
        }
        for g in range(4):
            for s2 in range(2):
                fns[f"v{g}{s2}"] = (lambda g=g, s2=s2: self.rd_v(b + 1, g, s2)) if nxt else None
        for nm, pos in zip(names, o.rdpos):
            if fns[nm] is not None and not (o.nolds and b >= 1): at(pos, fns[nm])
        for (pos, fn) in self.hooks.get(b, []): at(pos, fn)
        for (pos, keep) in o.waits:
            at(pos, lambda keep=keep: e.wait(lgkm=keep))
        for i in range(32):
            for fn in act[i]: fn()
            self.ex(b, i)
        for fn in act[32]: fn()

    def build_hooks(self):
        o = self.o; e = self.e
        H = {}; HP = {}
        def add(b, pos, fn): H.setdefault(b, []).append((pos, fn))
        def addp(b, pos, fn): HP.setdefault(b, []).append((pos, fn))
        sched = o.dsched
        grp = o.groups
        tagof = {}
        for gi, (rounds, pit, cit) in enumerate(grp):
            for r in rounds: tagof[r] = f"g{gi+1}"
        if not o.nodma:
            for r in range(2, 9):
                itk, itv = sched[r - 2]
                pk = o.dpos[0]; pv = o.dpos[1] if itk == itv else o.dpos[0]
                add(itk, pk - 1, lambda r=r: self.m0_set("k", r))
                add(itk, pk, lambda r=r: self.dma("k", r, tagof[r]))
                add(itv, pv - 1, lambda r=r: self.m0_set("v", r))
                add(itv, pv, lambda r=r: self.dma("v", r, tagof[r]))
        for gi, (rounds, pit, cit) in enumerate(grp):
            g = gi + 1
            if o.sync == "none": continue
            if o.sync == "flag":
                add(pit, o.ppos, lambda g=g: self.post(g, f"g{g}"))
                add(cit - 1, o.fpos, lambda g=g: self.flag_read(g))
                addp(cit, 0, lambda g=g: self.flag_check(g))
                addp(cit, 1, lambda g=g: self.flag_branch(g))
            else:
                def bar(g=g):
                    e.wait_vm_tag(f"g{g}")
                    e.other("s_barrier")
                addp(cit, 0, bar)
        self.hooks = H; self.hooks_pre = HP

    def combine(self):
        e = self.e
        E, D = vOe, vOo
        e.valu(f"v_cmp_lt_u32 vcc, 31, v{vLANE}", rd={vLANE}, sw={"vcc"})
        for k in range(2):
            e.emit(Ins(f"v_permlane32_swap_b32 v{D+k}, v{D+4+k}", "perm", rd={D + k, D + 4 + k}, wr={D + k, D + 4 + k}))
        for k in range(2):
            e.emit(Ins(f"v_permlane32_swap_b32 v{D+4+k}, v{D+8+k}", "perm", rd={D + 4 + k, D + 8 + k}, wr={D + 4 + k, D + 8 + k}))
        for k in range(2):
            e.valu(f"v_add_f32 v{E+k}, v{E+k}, v{D+2+k}", wr={E + k}, rd={E + k, D + 2 + k})
            e.valu(f"v_add_f32 v{E+4+k}, v{E+4+k}, v{D+6+k}", wr={E + 4 + k}, rd={E + 4 + k, D + 6 + k})
            e.valu(f"v_add_f32 v{E+8+k}, v{E+8+k}, v{D+10+k}", wr={E + 8 + k}, rd={E + 8 + k, D + 10 + k})
        e.valu(f"v_add_f32 v{E+12}, v{E+12}, v{D+12}", wr={E + 12}, rd={E + 12, D + 12})
        for k in range(2):
            a, b2 = vT[2 * k], vT[2 * k + 1]
            e.valu(f"v_cndmask_b32 v{a}, v{D+4+k}, v{D+k}, vcc", wr={a}, rd={D + 4 + k, D + k}, sr={"vcc"})
            e.valu(f"v_cndmask_b32 v{b2}, v{D+8+k}, v{D+4+k}, vcc", wr={b2}, rd={D + 8 + k, D + 4 + k}, sr={"vcc"})
            e.valu(f"v_add_f32 v{E+2+k}, v{E+2+k}, v{a}", wr={E + 2 + k}, rd={E + 2 + k, a})
            e.valu(f"v_add_f32 v{E+6+k}, v{E+6+k}, v{b2}", wr={E + 6 + k}, rd={E + 6 + k, b2})

    def epilogue(self):
        e = self.e
        O = vOe; L = O + 12
        t = vT
        e.trans(f"v_rcp_f32 v{t[0]}, v{L}", wr={t[0]}, rd={L})
        for i in range(10):
            e.valu(f"v_mul_f32 v{O+i}, v{O+i}, v{t[0]}", wr={O + i}, rd={O + i, t[0]})
        P = 24
        for j in range(5):
            e.valu(f"v_cvt_pk_bf16_f32 v{P+j}, v{O+2*j}, v{O+2*j+1}", wr={P + j}, rd={O + 2 * j, O + 2 * j + 1})
        e.emit(Ins(f"v_permlane32_swap_b32 v{P}, v{P+2}", "perm", rd={P, P + 2}, wr={P, P + 2}))
        e.emit(Ins(f"v_permlane32_swap_b32 v{P+1}, v{P+3}", "perm", rd={P + 1, P + 3}, wr={P + 1, P + 3}))
        e.nop(1)
        pol = self.o.stpol
        e.emit(Ins(f"buffer_store_dwordx4 {vr(P,4)}, v{vQsrc}, s[{sOut}:{sOut+3}], s{sQoff} offen{pol}", "vstore", rd=R(P, 4) | {vQsrc}))
        e.salu("s_mov_b64 exec, 0xffffffff")
        e.emit(Ins(f"buffer_store_dword v{P+4}, v{vQsrc}, s[{sOut}:{sOut+3}], s{sQoff} offen offset:32{pol}", "vstore", rd={P + 4, vQsrc}))

    def check(self):
        e = self.e
        O = vOe; L = O + 12
        t = vT
        e.valu(f"v_mul_f32 v{t[0]}, 0, v{O}", wr={t[0]}, rd={O})
        e.valu(f"v_mul_f32 v{t[1]}, 0, v{O+1}", wr={t[1]}, rd={O + 1})
        for i in range(2, 10):
            r = t[i & 1]
            e.valu(f"v_fma_f32 v{r}, v{O+i}, 0, v{r}", wr={r}, rd={O + i, r})
        e.salu(f"s_mov_b32 s{sTmp}, 0x{f32bits(2.0**-60):08x}")
        e.salu(f"s_mov_b32 s{sTmp+1}, 0x{f32bits(2.0**60):08x}")
        e.valu(f"v_add_f32 v{t[0]}, v{t[0]}, v{t[1]}", wr={t[0]}, rd={t[0], t[1]})
        e.valu(f"v_cmp_le_f32 s[4:5], s{sTmp}, v{L}", rd={L}, sw={"s4"})
        e.valu(f"v_cmp_ge_f32 s[6:7], s{sTmp+1}, v{L}", rd={L}, sw={"s6"})
        e.valu(f"v_cmp_eq_f32 vcc, 0, v{t[0]}", rd={t[0]}, sw={"vcc"})
        e.nop(1)
        e.salu("s_and_b64 s[4:5], s[4:5], s[6:7]", sr={"s4", "s6"})
        e.salu("s_and_b64 s[4:5], s[4:5], vcc", sr={"vcc"})
        e.salu("s_cmp_eq_u64 s[4:5], -1")
        if not self.o.nocheck: e.other("s_cbranch_scc0 L_fallback")

    def fallback(self):
        e = self.e
        e.label("L_fallback")
        e.reset_hist()
        A0, A1, KRp = vKA[0][0], vKA[0][1], vKR[0]
        X = SB[0]
        ka, kr, va, vd = vT[2], vT[3], vT[4], vT[5]
        def W(text): e.raw("    " + text)
        W(f"v_mov_b32 v{vB2z}, v{vB2}")
        W(f"v_mov_b32 v{vB2z+1}, 0")
        W(f"v_mov_b32 v{vM}, 0xff800000")
        def scores():
            W(f"ds_read_b64 {vr(A0,2)}, v{ka} offset:40")
            W(f"ds_read_b64 {vr(A0+2,2)}, v{ka} offset:48")
            W(f"ds_read_b64 {vr(A1,2)}, v{ka}")
            W(f"ds_read_b64 {vr(A1+2,2)}, v{ka} offset:8")
            W(f"ds_read_b32 v{KRp}, v{kr}")
            W("s_waitcnt lgkmcnt(0)")
            W(f"v_mfma_f32_32x32x16_bf16 {vr(X,16)}, {vr(A0,4)}, {vr(vQo,4)}, 0")
            W(f"v_mfma_f32_32x32x16_bf16 {vr(X+16,16)}, {vr(A1,4)}, {vr(vQe,4)}, 0")
            W("s_nop 15")
            W(f"v_mfma_f32_32x32x4_2b_bf16 {vr(X,32)}, {vr(KRp,2)}, {vr(vB2z,2)}, {vr(X,32)}")
            W("s_nop 15"); W("s_nop 7")
        W(f"v_mov_b32 v{ka}, v{vKa[0]}")
        W(f"v_mov_b32 v{kr}, v{vKr[0]}")
        W(f"s_mov_b32 s{sFb}, 32")
        e.label("L_fb1")
        scores()
        for i in range(0, 32, 2):
            W(f"v_max3_f32 v{vM}, v{vM}, v{X+i}, v{X+i+1}")
        W(f"v_add_u32 v{ka}, {BLK}, v{ka}")
        W(f"v_add_u32 v{kr}, {BLK}, v{kr}")
        W(f"s_sub_u32 s{sFb}, s{sFb}, 1")
        W(f"s_cmp_lg_u32 s{sFb}, 0")
        W("s_cbranch_scc1 L_fb1")
        W(f"v_mov_b32 v{vM+1}, v{vM}")
        W("s_nop 1")
        W(f"v_permlane32_swap_b32 v{vM}, v{vM+1}")
        W("s_nop 1")
        W(f"v_max_f32 v{vM}, v{vM}, v{vM+1}")
        for i in range(16):
            W(f"v_mov_b32 v{vOo+i}, 0"); W(f"v_mov_b32 v{vOe+i}, 0")
        W(f"v_mov_b32 v{ka}, v{vKa[0]}")
        W(f"v_mov_b32 v{kr}, v{vKr[0]}")
        W(f"v_mov_b32 v{va}, v{vVa[0]}")
        W(f"v_sub_u32 v{vd}, v{vVa[1]}, v{vVa[0]}")
        W(f"v_lshrrev_b32 v{vd}, 2, v{vd}")
        W(f"s_mov_b32 s{sFb}, 32")
        e.label("L_fb2")
        VF = vVF[0]
        for g in range(4):
            for s2 in range(2):
                off = 1152 * (g & 1) + 288 * s2 + (32 if g < 2 else 0)
                W(f"ds_read_b64_tr_b16 {vr(VF+4*g+2*s2,2)}, v{va} offset:{off}")
        scores()
        for i in range(32):
            W(f"v_sub_f32 v{X+i}, v{X+i}, v{vM}")
        for i in range(32):
            W(f"v_exp_f32 v{X+i}, v{X+i}")
        W("s_nop 1")
        for g in range(4):
            O = vOo if g < 2 else vOe
            W(f"v_smfmac_f32_32x32x32_bf16 {vr(O,16)}, {vr(VF+4*g,4)}, {vr(X+8*g,8)}, v{vIDX}")
        W("s_nop 7")
        W(f"v_add_u32 v{ka}, {BLK}, v{ka}")
        W(f"v_add_u32 v{kr}, {BLK}, v{kr}")
        W(f"v_add_u32 v{va}, v{vd}, v{va}")
        W(f"s_sub_u32 s{sFb}, s{sFb}, 1")
        W(f"s_cmp_lg_u32 s{sFb}, 0")
        W("s_cbranch_scc1 L_fb2")
        W("s_nop 15")
        W(f"s_mov_b32 s{sFb+1}, 1")
        W("s_branch L_combine")

    def spinloops(self):
        e = self.e
        for g in self.spins:
            e.label(f"L_spin{g}")
            e.raw(f"    ds_read_b32 v{vFlagV}, v{vFlagR} offset:{32*g}")
            e.raw("    s_waitcnt lgkmcnt(0)")
            e.raw(f"    v_cmp_ne_u32 vcc, v{vIDX}, v{vFlagV}")
            e.raw("    s_nop 1")
            e.raw(f"    s_cbranch_vccnz L_spin{g}")
            e.raw(f"    s_branch L_back{g}")

    def dump_stamps(self):
        if not self.o.stamps: return
        e = self.e
        n = self.nstamp
        W = lambda t: e.raw("    " + t)
        W("s_mov_b64 exec, 1")
        W("s_and_b32 s15, s15, 0xffff")
        W("s_mov_b32 s4, s14"); W("s_mov_b32 s5, s15"); W("s_mov_b32 s6, 0x1000000"); W("s_mov_b32 s7, 0x20000")
        W("s_lshl_b32 s8, s2, 3"); W(f"s_add_u32 s8, s8, s{sW}"); W("s_lshl_b32 s8, s8, 7")
        for i in range(n):
            W(f"s_sub_u32 s9, s{sStamp+2*i}, s{sStamp}")
            W("v_mov_b32 v1, s9")
            W(f"v_mov_b32 v2, {4*i}")
            W("buffer_store_dword v1, v2, s[4:7], s8 offen")
            W("s_nop 1")
        W("s_sub_u32 s9, s98, s96")
        W("v_mov_b32 v1, s9")
        W(f"v_mov_b32 v2, {4*n}")
        W("buffer_store_dword v1, v2, s[4:7], s8 offen")
        W("s_nop 1")
        W("v_mov_b32 v1, s96")
        W(f"v_mov_b32 v2, {4*n+4}")
        W("buffer_store_dword v1, v2, s[4:7], s8 offen")
        W("s_nop 1")
        W("v_mov_b32 v1, s98")
        W(f"v_mov_b32 v2, {4*n+8}")
        W("buffer_store_dword v1, v2, s[4:7], s8 offen")
        W("s_waitcnt vmcnt(0)")
        self.stampnames += ["rt", "rt0", "rt1"]

    def build(self):
        e = self.e; o = self.o
        self.build_hooks()
        self.prologue()
        for b in range(32):
            self.iteration(b)
            if o.stamps and (f"it{b}" in o.stampsel):
                self.stamp(f"it{b}")
        e.nop(2)
        self.mm_pv(31, 3)
        self.stamp("loop")
        e.salu(f"s_mov_b32 s{sFb+1}, 0")
        if o.force_fb:
            e.nop(16)
            e.other("s_branch L_fallback")
        e.label("L_combine")
        self.combine()
        e.salu(f"s_cmp_lg_u32 s{sFb+1}, 0")
        e.other("s_cbranch_scc1 L_store")
        self.check()
        e.label("L_store")
        self.epilogue()
        if o.repeat > 1:
            e.raw("    s_mov_b64 exec, -1")
            e.raw("    s_waitcnt vmcnt(0) lgkmcnt(0)")
            e.raw("    s_barrier")
            e.raw("    s_sub_u32 s50, s50, 1")
            e.raw("    s_cmp_lg_u32 s50, 0")
            e.raw("    s_cbranch_scc1 L_again")
        self.stamp("end")
        self.dump_stamps()
        e.label("L_end")
        e.raw("    s_endpgm")
        self.spinloops()
        self.fallback()
        body = e.text()
        src = HEADER
        src += "; Override launch geometry by editing the next line (default: block=256,\n; grid=ceil(out_elems/256), lds=0). Harness parses it; keep it on one line.\n"
        src += f"; @launch grid=(256,1,1) block=(512,1,1) lds={LDS_BYTES}\n"
        src += f""".amdgcn_target "amdgcn-amd-amdhsa--gfx950"
.text
.globl {NAME}_kernel
.p2align 8
.type {NAME}_kernel,@function
{NAME}_kernel:
{body}.section .rodata,"a"
.p2align 6
.amdhsa_kernel {NAME}_kernel
  .amdhsa_next_free_vgpr {vNV}
  .amdhsa_next_free_sgpr 102
  .amdhsa_accum_offset {vNV}
  .amdhsa_group_segment_fixed_size 0
  .amdhsa_kernarg_size 48
  .amdhsa_user_sgpr_count 2
  .amdhsa_user_sgpr_kernarg_segment_ptr 1
  .amdhsa_system_sgpr_workgroup_id_x 1
.end_amdhsa_kernel
"""
        return src

def get_opts(argv=None):
    p = argparse.ArgumentParser()
    p.add_argument("-o", default="cdna_kernels/" + NAME + ".s")
    p.add_argument("--stamps", type=int, default=0)
    p.add_argument("--stampsel", default="")
    p.add_argument("--force_fb", type=int, default=0)
    p.add_argument("--nocheck", type=int, default=0)
    p.add_argument("--rot", type=int, default=1)
    p.add_argument("--ordbar", type=int, default=1)
    p.add_argument("--sync", default="flag")
    p.add_argument("--nodma", type=int, default=0)
    p.add_argument("--nolds", type=int, default=0)
    p.add_argument("--mpos", default="2,4,12,18,22,26,29")
    p.add_argument("--rdpos", default="2,2,4,4,12,12,18,18,22,22,26,26,29")
    p.add_argument("--waits", default="4:2,22:9")
    p.add_argument("--dsched", default="0:0,1:2,3:4,5:6,7:8,9:10,11:12")
    p.add_argument("--dpos", default="23,27")
    p.add_argument("--groups", default="1;0;1/2;3;5/3,4;6;8/5,6;10;15/7,8;14;22")
    p.add_argument("--ppos", type=int, default=30)
    p.add_argument("--fpos", type=int, default=29)
    p.add_argument("--stpol", default="")
    p.add_argument("--repeat", type=int, default=1)
    o = p.parse_args(argv)
    o.stampsel = [x for x in o.stampsel.split(",") if x]
    o.rdpos = [int(x) for x in o.rdpos.split(",")]
    o.mpos = [int(x) for x in o.mpos.split(",")]
    o.dpos = [int(x) for x in o.dpos.split(",")]
    o.waits = [tuple(int(y) for y in x.split(":")) for x in o.waits.split(",") if x]
    o.dsched = [tuple(int(y) for y in x.split(":")) for x in o.dsched.split(",")]
    o.groups = [([int(r) for r in g.split(";")[0].split(",")], int(g.split(";")[1]), int(g.split(";")[2])) for g in o.groups.split("/")]
    if o.stpol: o.stpol = " " + o.stpol.replace("+", " ")
    return o

if __name__ == "__main__":
    o = get_opts()
    g = Gen(o)
    src = g.build()
    open(o.o, "w").write(src)
    print("instructions:", g.e.nins, "nop states:", g.e.nops, "bytes src:", len(src))
    for l in g.e.log[:60]: print("  ", l)
    if o.stamps: print("stamps:", ",".join(g.stampnames))
```

```python
import sys, os, argparse, struct
sys.path.insert(0, os.path.dirname(os.path.abspath(__file__)))
from asmlib import *

NAME = "standalone__fused_io_aware_attn__prompt"
HEADER = open("cdna_kernels/" + NAME + ".s.ref").read().split("; Override launch")[0]

HEAD_BYTES = 2048 * 36
TENSOR_BYTES = 32 * HEAD_BYTES
BLK = 64 * 36
KM = 0
VM = HEAD_BYTES
ONES = 2 * HEAD_BYTES
FLAG = ONES + 9216
LDS_BYTES = FLAG + 256

vLANE, vQsrc, vDsrc = 1, 2, 3
vKa = [4, 5]; vKr = [6, 7]
vVa = list(range(8, 16))
vIDX, vFlagR, vFlagW, vFlagV = 16, 17, 18, 19
vT = list(range(20, 32))
SB = [32, 64]
vOo, vOe = 96, 112
vKA = [[128, 132], [136, 140]]
vKR = [144, 146]
vQo, vQe, vB2 = 148, 152, 156
vVF = [160, 176]
vQraw = 176
vB2z, vM = 192, 194
vNV = 200

sW = 3
sQ, sK, sV, sOut = 16, 20, 24, 28
sDst = 32
sQoff = 33
sSrc = list(range(34, 43))
sTmp = 44
sFb = 48
sStamp = 52

C_SCALE = 1.4426950408889634 / (18.0 ** 0.5)
def f32bits(x): return struct.unpack("<I", struct.pack("<f", x))[0]

class Gen:
    def __init__(self, opt):
        self.o = opt
        self.e = Emitter()
        self.nstamp = 0
        self.stampnames = []
        self.spins = []

    def stamp(self, name):
        if not self.o.stamps: return
        if self.o.stampsel and name not in self.o.stampsel and name not in ("start", "end"): return
        e = self.e
        i = self.nstamp; self.nstamp += 1
        s = sStamp + 2 * i
        assert s + 1 < 94
        e.wait(lgkm=0)
        e.other(f"s_memtime s[{s}:{s+1}]")
        if name == "start": e.other("s_memrealtime s[96:97]")
        if name == "end": e.other("s_memrealtime s[98:99]")
        e.raw("    s_waitcnt lgkmcnt(0)")
        self.stampnames.append(name)

    def m0_set(self, tens, r):
        base = (KM if tens == "k" else VM) + r * 8192
        self.e.salu(f"s_add_u32 m0, s{sDst}, {base}", sw={"m0"})
    def dma(self, tens, r, tag):
        srd = sK if tens == "k" else sV
        self.e.emit(Ins(f"buffer_load_dwordx4 v{vDsrc}, s[{srd}:{srd+3}], s{sSrc[r]} offen lds", "dma", rd={vDsrc}), tag=tag)

    def rd_k(self, b, t, half):
        d = vKA[b & 1][t] + 2 * half
        off = (b % 16) * BLK + (40 if t == 0 else 0) + 8 * half
        a = vKa[b // 16]
        self.e.emit(Ins(f"ds_read_b64 {vr(d,2)}, v{a} offset:{off}", "ds_read", rd={a}, wr=R(d, 2)))
    def rd_kr(self, b):
        d = vKR[b & 1]; a = vKr[b // 16]
        self.e.emit(Ins(f"ds_read_b32 v{d}, v{a} offset:{(b % 16) * BLK}", "ds_read", rd={a}, wr={d}))
    def rd_v(self, b, g, s2):
        d = vVF[b & 1] + 4 * g + 2 * s2
        t = g >> 1
        off = (b % 4) * BLK + 1152 * (g & 1) + 288 * s2 + (32 if t == 0 else 0)
        a = vVa[b // 4]
        self.e.emit(Ins(f"ds_read_b64_tr_b16 {vr(d,2)}, v{a} offset:{off}", "ds_read", rd={a}, wr=R(d, 2)))
    def mm_main(self, b, t, czero=False):
        D = SB[b & 1] + 16 * t; A = vKA[b & 1][t]; B = vQo if t == 0 else vQe
        if czero:
            self.e.emit(Ins(f"v_mfma_f32_32x32x16_bf16 {vr(D,16)}, {vr(A,4)}, {vr(B,4)}, 0", "mfma",
                            rd=R(A, 4) | R(B, 4), wr=R(D, 16), passes=8))
        else:
            self.e.emit(Ins(f"v_mfma_f32_32x32x16_bf16 {vr(D,16)}, {vr(A,4)}, {vr(B,4)}, {vr(D,16)}", "mfma",
                            rd=R(A, 4) | R(B, 4), wr=R(D, 16), srcc=R(D, 16), passes=8))
    def mm_rem(self, b, czero=True):
        D = SB[b & 1]; A = vKR[b & 1]; B = vB2
        if czero:
            self.e.emit(Ins(f"v_mfma_f32_32x32x4_2b_bf16 {vr(D,32)}, {vr(A,2)}, {vr(B,2)}, 0", "mfma",
                            rd=R(A, 2) | R(B, 2), wr=R(D, 32), passes=16))
        else:
            self.e.emit(Ins(f"v_mfma_f32_32x32x4_2b_bf16 {vr(D,32)}, {vr(A,2)}, {vr(B,2)}, {vr(D,32)}", "mfma",
                            rd=R(A, 2) | R(B, 2), wr=R(D, 32), srcc=R(D, 32), passes=16))
    def mm_pv(self, b, g):
        A = vVF[b & 1] + 4 * g; B = SB[b & 1] + 8 * g
        O = vOo if g < 2 else vOe
        self.e.emit(Ins(f"v_smfmac_f32_32x32x32_bf16 {vr(O,16)}, {vr(A,4)}, {vr(B,8)}, v{vIDX}", "mfma",
                        rd=R(A, 4) | R(B, 8) | {vIDX}, wr=R(O, 16), srcc=R(O, 16), passes=8))
    def ex(self, b, i):
        r = SB[b & 1] + i
        self.e.trans(f"v_exp_f32 v{r}, v{r}", wr={r}, rd={r})

    def post(self, g, tag):
        e = self.e
        e.wait_vm_tag(tag)
        if self.o.sync == "flag":
            e.emit(Ins(f"ds_write_b32 v{vFlagW}, v{vIDX} offset:{32*g}", "ds_write", rd={vFlagW, vIDX}))
    def flag_read(self, g):
        if self.o.sync == "flag":
            self.e.emit(Ins(f"ds_read_b32 v{vFlagV}, v{vFlagR} offset:{32*g}", "ds_read", rd={vFlagR}, wr={vFlagV}))
    def flag_check(self, g):
        e = self.e
        if self.o.sync == "flag":
            e.valu(f"v_cmp_ne_u32 vcc, v{vIDX}, v{vFlagV}", rd={vIDX, vFlagV}, sw={"vcc"})
            self.pending_branch = g
        elif self.o.sync == "bar":
            e.other("s_barrier")
    def flag_branch(self, g):
        e = self.e
        if self.o.sync == "flag":
            e.other(f"s_cbranch_vccnz L_spin{g}")
            e.label(f"L_back{g}")
            self.spins.append(g)

    def prologue(self):
        e = self.e; o = self.o
        t0, t1, t2, t3 = vT[0:4]
        e.salu("s_cmp_ge_u32 s2, 0x100")
        e.other("s_cbranch_scc1 L_end")
        if o.stamps: self.stamp("start")
        for (srd, off) in ((sQ, 0), (sK, 8), (sV, 16), (sOut, 24)):
            e.other(f"s_load_dwordx2 s[{srd}:{srd+1}], s[0:1], {off}")
        if o.stamps:
            e.other("s_load_dwordx2 s[14:15], s[0:1], 40")
        if o.repeat > 1:
            e.salu(f"s_mov_b32 s50, {o.repeat}")
            e.label("L_again")
        e.valu(f"v_lshrrev_b32 v{t0}, 6, v0", wr={t0}, rd={0})
        e.valu(f"v_and_b32 v{vLANE}, 63, v0", wr={vLANE}, rd={0})
        e.emit(Ins(f"v_readfirstlane_b32 s{sW}, v{t0}", "valu", rd={t0}, sw={f"s{sW}"}))
        e.valu(f"v_and_b32 v{t0}, 31, v{vLANE}", wr={t0}, rd={vLANE})
        e.valu(f"v_lshrrev_b32 v{t1}, 5, v{vLANE}", wr={t1}, rd={vLANE})
        e.valu(f"v_mul_u32_u24 v{t2}, 36, v{t0}", wr={t2}, rd={t0})
        e.valu(f"v_lshl_add_u32 v{vQsrc}, v{t1}, 4, v{t2}", wr={vQsrc}, rd={t1, t2})
        e.valu(f"v_lshlrev_b32 v{vDsrc}, 4, v{vLANE}", wr={vDsrc}, rd={vLANE})
        e.salu("s_and_b32 s12, s2, 7")
        e.salu("s_lshr_b32 s13, s2, 3")
        e.salu("s_lshr_b32 s4, s13, 3")
        e.salu("s_lshl_b32 s12, s12, 2")
        e.salu("s_add_u32 s12, s12, s4")
        e.salu("s_and_b32 s13, s13, 7")
        e.salu(f"s_mul_i32 s12, s12, {HEAD_BYTES}")
        e.salu(f"s_mul_i32 s13, s13, {256*36}")
        e.salu(f"s_mul_i32 s5, s{sW}, 1152", sr={f"s{sW}"})
        e.salu(f"s_lshl_b32 s{sDst}, s{sW}, 10")
        e.salu(f"s_add_u32 s{sQoff}, s13, s5")
        e.salu(f"s_add_u32 s{sQoff}, s{sQoff}, s12")
        if o.rot:
            e.salu(f"s_add_u32 s6, s{sDst}, s13")
        else:
            e.salu(f"s_mov_b32 s6, s{sDst}")
        e.salu(f"s_add_u32 s{sSrc[0]}, s6, s12")
        for srd in (sQ, sK, sV, sOut):
            e.salu(f"s_mov_b32 s{srd+2}, {TENSOR_BYTES}")
            e.salu(f"s_mov_b32 s{srd+3}, 0x20000")
        self.m0_set("k", 0)
        e.raw("    s_waitcnt lgkmcnt(0)")
        e.hist.append(Ins("w", "other"))
        self.stamp("karg")
        e.emit(Ins(f"buffer_load_dwordx4 {vr(vQraw,4)}, v{vQsrc}, s[{sQ}:{sQ+3}], s{sQoff} offen", "vload", rd={vQsrc}, wr=R(vQraw, 4)), tag="q")
        e.emit(Ins(f"buffer_load_dword v{vQraw+4}, v{vQsrc}, s[{sQ}:{sQ+3}], s{sQoff} offen offset:16", "vload", rd={vQsrc}, wr={vQraw + 4}), tag="q")
        self.dma("k", 0, "k0")
        for r in range(1, 9):
            e.salu(f"s_add_u32 s7, s6, {r*8192}")
            if o.rot:
                e.salu(f"s_sub_u32 s8, s7, {HEAD_BYTES}")
                e.salu("s_min_u32 s7, s7, s8")
            e.salu(f"s_add_u32 s{sSrc[r]}, s7, s12")
        self.m0_set("v", 0)
        if o.ordbar: e.other("s_barrier")
        e.valu(f"v_mul_u32_u24 v{t2}, 72, v{t0}", wr={t2}, rd={t0})
        self.dma("v", 0, "v0")
        self.m0_set("k", 1)
        e.valu(f"v_lshl_add_u32 v{vKa[0]}, v{t1}, 4, v{t2}", wr={vKa[0]}, rd={t1, t2})
        self.dma("k", 1, "g1")
        self.m0_set("v", 1)
        e.valu(f"v_add_u32 v{vKa[1]}, {16*BLK}, v{vKa[0]}", wr={vKa[1]}, rd={vKa[0]})
        self.dma("v", 1, "g1")
        e.valu(f"v_lshlrev_b32 v{t3}, 2, v{t1}", wr={t3}, rd={t1})
        e.valu(f"v_sub_u32 v{t3}, v{t2}, v{t3}", wr={t3}, rd={t2, t3})
        e.valu(f"v_add_u32 v{vKr[0]}, 36, v{t3}", wr={vKr[0]}, rd={t3})
        e.valu(f"v_add_u32 v{vKr[1]}, {16*BLK+36}, v{t3}", wr={vKr[1]}, rd={t3})
        a, b2, c2 = vT[4], vT[5], vT[6]
        e.valu(f"v_bfe_u32 v{t0}, v{vLANE}, 2, 2", wr={t0}, rd={vLANE})
        e.valu(f"v_mul_u32_u24 v{t0}, 72, v{t0}", wr={t0}, rd={t0})
        e.valu(f"v_mul_u32_u24 v{t2}, 576, v{t1}", wr={t2}, rd={t1})
        e.valu(f"v_add_u32 v{t0}, v{t0}, v{t2}", wr={t0}, rd={t0, t2})
        e.valu(f"v_and_b32 v{t2}, 3, v{vLANE}", wr={t2}, rd={vLANE})
        e.valu(f"v_bfe_u32 v{t3}, v{vLANE}, 4, 1", wr={t3}, rd={vLANE})
        e.valu(f"v_lshl_add_u32 v{t2}, v{t3}, 2, v{t2}", wr={t2}, rd={t3, t2})
        e.valu(f"v_lshl_add_u32 v{t0}, v{t2}, 3, v{t0}", wr={t0}, rd={t2, t0})
        e.valu(f"v_cmp_lt_u32 vcc, 4, v{t2}", rd={t2}, sw={"vcc"})
        e.valu(f"v_lshlrev_b32 v{a}, 6, v{t1}", wr={a}, rd={t1})
        e.valu(f"v_add_u32 v{a}, {ONES + 40}, v{a}", wr={a}, rd={a})
        for c in range(8):
            e.valu(f"v_add_u32 v{b2}, {VM + c*4*BLK}, v{t0}", wr={b2}, rd={t0})
            e.valu(f"v_cndmask_b32 v{vVa[c]}, v{b2}, v{a}, vcc", wr={vVa[c]}, rd={a, b2}, sr={"vcc"})
        e.valu(f"v_mov_b32 v{vIDX}, 0xdddddddd", wr={vIDX})
        P = vT[8]
        assert P % 4 == 0
        e.valu(f"v_mov_b32 v{P}, 0x3f80", wr={P})
        e.valu(f"v_mov_b32 v{P+1}, 0", wr={P + 1})
        e.valu(f"v_mov_b32 v{P+2}, 0x3f80", wr={P + 2})
        e.valu(f"v_mov_b32 v{P+3}, 0", wr={P + 3})
        e.valu(f"v_add_u32 v{a}, s{sDst}, v{vDsrc}", wr={a}, rd={vDsrc})
        e.valu(f"v_add_u32 v{a}, {ONES}, v{a}", wr={a}, rd={a})
        e.valu(f"v_add_u32 v{b2}, {ONES + 8192}, v{vDsrc}", wr={b2}, rd={vDsrc})
        e.emit(Ins(f"ds_write_b128 v{a}, {vr(P,4)}", "ds_write", rd={a} | R(P, 4)))
        e.emit(Ins(f"ds_write_b128 v{b2}, {vr(P,4)}", "ds_write", rd={b2} | R(P, 4)))
        if o.sync == "flag":
            e.valu(f"v_lshlrev_b32 v{c2}, 2, v{vLANE}", wr={c2}, rd={vLANE})
            e.valu(f"v_add_u32 v{c2}, {FLAG}, v{c2}", wr={c2}, rd={c2})
            e.emit(Ins(f"ds_write_b32 v{c2}, v{P+1}", "ds_write", rd={c2, P + 1}))
            e.valu(f"v_and_b32 v{vFlagR}, 7, v{vLANE}", wr={vFlagR}, rd={vLANE})
            e.valu(f"v_lshlrev_b32 v{vFlagR}, 2, v{vFlagR}", wr={vFlagR}, rd={vFlagR})
            e.valu(f"v_add_u32 v{vFlagR}, {FLAG}, v{vFlagR}", wr={vFlagR}, rd={vFlagR})
            e.salu(f"s_lshl_b32 s7, s{sW}, 2")
            e.salu(f"s_add_u32 s7, s7, {FLAG}")
            e.valu(f"v_mov_b32 v{vFlagW}, s7", wr={vFlagW})
        e.valu(f"v_mov_b32 v{vKR[0]+1}, 0x3f803f80", wr={vKR[0] + 1})
        e.valu(f"v_mov_b32 v{vKR[1]+1}, 0x3f803f80", wr={vKR[1] + 1})
        for i in range(16):
            e.valu(f"v_mov_b32 v{vOo+i}, 0", wr={vOo + i})
            e.valu(f"v_mov_b32 v{vOe+i}, 0", wr={vOe + i})
        e.salu(f"s_mov_b32 s{sTmp+1}, 0x{f32bits(C_SCALE):08x}")
        e.salu(f"s_mov_b32 s{sTmp+2}, 0xffff0000")
        e.valu(f"v_cmp_lt_u32 vcc, 31, v{vLANE}", rd={vLANE}, sw={"vcc"})
        for j in range(5):
            a, b2 = vT[4 + 2 * (j & 1)], vT[5 + 2 * (j & 1)]
            e.valu(f"v_lshlrev_b32 v{a}, 16, v{vQraw+j}", wr={a}, rd={vQraw + j})
            e.valu(f"v_and_b32 v{b2}, s{sTmp+2}, v{vQraw+j}", wr={b2}, rd={vQraw + j})
            e.valu(f"v_mul_f32 v{a}, s{sTmp+1}, v{a}", wr={a}, rd={a})
            e.valu(f"v_mul_f32 v{b2}, s{sTmp+1}, v{b2}", wr={b2}, rd={b2})
            if j < 4: e.valu(f"v_cvt_pk_bf16_f32 v{vQe+j}, v{a}, v{b2}", wr={vQe + j}, rd={a, b2})
            if j > 0: e.valu(f"v_cvt_pk_bf16_f32 v{vQo+j-1}, v{a}, v{b2}", wr={vQo + j - 1}, rd={a, b2})
        e.valu(f"v_cndmask_b32 v{vB2}, v{vQe}, v{vQo+3}, vcc", wr={vB2}, rd={vQe, vQo + 3}, sr={"vcc"})
        self.stamp("qdone")
        e.wait_vm_tag("k0")
        e.wait(lgkm=0)
        e.other("s_barrier")
        self.stamp("B0a")
        self.rd_k(0, 0, 0); self.rd_k(0, 0, 1)
        self.rd_k(0, 1, 0); self.rd_k(0, 1, 1)
        self.rd_kr(0)
        self.rd_kr(1)
        self.mm_main(0, 0, czero=True)
        self.rd_k(1, 0, 0); self.rd_k(1, 0, 1)
        self.mm_main(0, 1, czero=True)
        self.rd_k(1, 1, 0); self.rd_k(1, 1, 1)
        e.wait_vm_tag("v0")
        X = SB[0]
        m0r, m1r = vT[0], vT[1]
        e.valu(f"v_max3_f32 v{m0r}, v{X}, v{X+1}, v{X+2}", wr={m0r}, rd=R(X, 3))
        e.valu(f"v_max3_f32 v{m1r}, v{X+3}, v{X+4}, v{X+5}", wr={m1r}, rd=R(X + 3, 3))
        e.other("s_barrier")
        e.valu(f"v_max3_f32 v{m0r}, v{m0r}, v{X+6}, v{X+7}", wr={m0r}, rd=R(X + 6, 2) | {m0r})
        e.valu(f"v_max3_f32 v{m1r}, v{m1r}, v{X+8}, v{X+9}", wr={m1r}, rd=R(X + 8, 2) | {m1r})
        self.rd_v(0, 0, 0); self.rd_v(0, 0, 1)
        e.valu(f"v_max3_f32 v{m0r}, v{m0r}, v{X+10}, v{X+11}", wr={m0r}, rd=R(X + 10, 2) | {m0r})
        e.valu(f"v_max3_f32 v{m1r}, v{m1r}, v{X+12}, v{X+13}", wr={m1r}, rd=R(X + 12, 2) | {m1r})
        self.rd_v(0, 1, 0); self.rd_v(0, 1, 1)
        e.valu(f"v_max3_f32 v{m0r}, v{m0r}, v{X+14}, v{X+15}", wr={m0r}, rd=R(X + 14, 2) | {m0r})
        e.valu(f"v_max_f32 v{m0r}, v{m0r}, v{m1r}", wr={m0r}, rd={m0r, m1r})
        e.valu(f"v_mov_b32 v{m1r}, v{m0r}", wr={m1r}, rd={m0r})
        self.rd_v(0, 2, 0); self.rd_v(0, 2, 1)
        e.emit(Ins(f"v_permlane32_swap_b32 v{m0r}, v{m1r}", "perm", rd={m0r, m1r}, wr={m0r, m1r}))
        self.rd_v(0, 3, 0); self.rd_v(0, 3, 1)
        e.valu(f"v_max_f32 v{m0r}, v{m0r}, v{m1r}", wr={m0r}, rd={m0r, m1r})
        e.valu(f"v_cvt_pk_bf16_f32 v{m1r}, -v{m0r}, -v{m0r}", wr={m1r}, rd={m0r})
        e.valu(f"v_lshlrev_b32 v{m1r}, 16, v{m1r}", wr={m1r}, rd={m1r})
        e.valu(f"v_add_f32 v{m1r}, v{m0r}, v{m1r}", wr={m1r}, rd={m0r, m1r})
        e.valu(f"v_cvt_pk_bf16_f32 v{vB2+1}, -v{m0r}, -v{m1r}", wr={vB2 + 1}, rd={m0r, m1r})
        self.mm_rem(0, czero=False)
        self.stamp("prol")

    def iteration(self, b, NB=32):
        e = self.e; o = self.o
        if o.prio == "saw": e.other(f"s_setprio {3 - (b % 4)}")
        if o.prio == "saw2": e.other(f"s_setprio {1 - (b % 2)}")
        nxt = b + 1 < NB
        act = {i: [] for i in range(33)}
        def at(i, fn): act[i].append(fn)
        mp = o.mpos
        if b > 0: at(mp[0], lambda: self.mm_pv(b - 1, 3))
        if nxt: at(mp[1], lambda: self.mm_rem(b + 1))
        at(mp[2], lambda: self.mm_pv(b, 0))
        at(mp[3], lambda: self.mm_pv(b, 1))
        if nxt: at(mp[4], lambda: self.mm_main(b + 1, 0))
        if nxt: at(mp[5], lambda: self.mm_main(b + 1, 1))
        at(mp[6], lambda: self.mm_pv(b, 2))
        for (pos, fn) in self.hooks_pre.get(b, []): at(pos, fn)
        rds = []
        k2 = b + 2 < NB
        names = ["kr", "v00", "v01", "v10", "v11", "k00", "k01", "k10", "k11", "v20", "v21", "v30", "v31"]
        fns = {
            "kr": (lambda: self.rd_kr(b + 2)) if k2 else None,
            "k00": (lambda: self.rd_k(b + 2, 0, 0)) if k2 else None,
            "k01": (lambda: self.rd_k(b + 2, 0, 1)) if k2 else None,
            "k10": (lambda: self.rd_k(b + 2, 1, 0)) if k2 else None,
            "k11": (lambda: self.rd_k(b + 2, 1, 1)) if k2 else None,
        }
        for g in range(4):
            for s2 in range(2):
                fns[f"v{g}{s2}"] = (lambda g=g, s2=s2: self.rd_v(b + 1, g, s2)) if nxt else None
        for nm, pos in zip(names, o.rdpos):
            if fns[nm] is not None and not (o.nolds and b >= 1): at(pos, fns[nm])
        for (pos, fn) in self.hooks.get(b, []): at(pos, fn)
        for (pos, keep) in o.waits:
            at(pos, lambda keep=keep: e.wait(lgkm=keep))
        for i in range(32):
            for fn in act[i]: fn()
            self.ex(b, i)
        for fn in act[32]: fn()

    def build_hooks(self):
        o = self.o; e = self.e
        H = {}; HP = {}
        def add(b, pos, fn): H.setdefault(b, []).append((pos, fn))
        def addp(b, pos, fn): HP.setdefault(b, []).append((pos, fn))
        sched = o.dsched
        grp = o.groups
        tagof = {}
        for gi, (rounds, pit, cit) in enumerate(grp):
            for r in rounds: tagof[r] = f"g{gi+1}"
        if not o.nodma:
            for r in range(2, 9):
                itk, itv = sched[r - 2]
                pk = o.dpos[0]; pv = o.dpos[1] if itk == itv else o.dpos[0]
                add(itk, pk - 1, lambda r=r: self.m0_set("k", r))
                add(itk, pk, lambda r=r: self.dma("k", r, tagof[r]))
                add(itv, pv - 1, lambda r=r: self.m0_set("v", r))
                add(itv, pv, lambda r=r: self.dma("v", r, tagof[r]))
        for gi, (rounds, pit, cit) in enumerate(grp):
            g = gi + 1
            if o.sync == "none": continue
            if o.sync == "flag":
                add(pit, o.ppos, lambda g=g: self.post(g, f"g{g}"))
                add(cit - 1, o.fpos, lambda g=g: self.flag_read(g))
                addp(cit, 0, lambda g=g: self.flag_check(g))
                addp(cit, 1, lambda g=g: self.flag_branch(g))
            else:
                def bar(g=g):
                    e.wait_vm_tag(f"g{g}")
                    e.other("s_barrier")
                addp(cit, 0, bar)
        self.hooks = H; self.hooks_pre = HP

    def combine(self):
        e = self.e
        E, D = vOe, vOo
        e.valu(f"v_cmp_lt_u32 vcc, 31, v{vLANE}", rd={vLANE}, sw={"vcc"})
        for k in range(2):
            e.emit(Ins(f"v_permlane32_swap_b32 v{D+k}, v{D+4+k}", "perm", rd={D + k, D + 4 + k}, wr={D + k, D + 4 + k}))
        for k in range(2):
            e.emit(Ins(f"v_permlane32_swap_b32 v{D+4+k}, v{D+8+k}", "perm", rd={D + 4 + k, D + 8 + k}, wr={D + 4 + k, D + 8 + k}))
        for k in range(2):
            e.valu(f"v_add_f32 v{E+k}, v{E+k}, v{D+2+k}", wr={E + k}, rd={E + k, D + 2 + k})
            e.valu(f"v_add_f32 v{E+4+k}, v{E+4+k}, v{D+6+k}", wr={E + 4 + k}, rd={E + 4 + k, D + 6 + k})
            e.valu(f"v_add_f32 v{E+8+k}, v{E+8+k}, v{D+10+k}", wr={E + 8 + k}, rd={E + 8 + k, D + 10 + k})
        e.valu(f"v_add_f32 v{E+12}, v{E+12}, v{D+12}", wr={E + 12}, rd={E + 12, D + 12})
        for k in range(2):
            a, b2 = vT[2 * k], vT[2 * k + 1]
            e.valu(f"v_cndmask_b32 v{a}, v{D+4+k}, v{D+k}, vcc", wr={a}, rd={D + 4 + k, D + k}, sr={"vcc"})
            e.valu(f"v_cndmask_b32 v{b2}, v{D+8+k}, v{D+4+k}, vcc", wr={b2}, rd={D + 8 + k, D + 4 + k}, sr={"vcc"})
            e.valu(f"v_add_f32 v{E+2+k}, v{E+2+k}, v{a}", wr={E + 2 + k}, rd={E + 2 + k, a})
            e.valu(f"v_add_f32 v{E+6+k}, v{E+6+k}, v{b2}", wr={E + 6 + k}, rd={E + 6 + k, b2})

    def epilogue(self):
        e = self.e
        O = vOe; L = O + 12
        t = vT
        e.trans(f"v_rcp_f32 v{t[0]}, v{L}", wr={t[0]}, rd={L})
        for i in range(10):
            e.valu(f"v_mul_f32 v{O+i}, v{O+i}, v{t[0]}", wr={O + i}, rd={O + i, t[0]})
        P = 24
        for j in range(5):
            e.valu(f"v_cvt_pk_bf16_f32 v{P+j}, v{O+2*j}, v{O+2*j+1}", wr={P + j}, rd={O + 2 * j, O + 2 * j + 1})
        e.emit(Ins(f"v_permlane32_swap_b32 v{P}, v{P+2}", "perm", rd={P, P + 2}, wr={P, P + 2}))
        e.emit(Ins(f"v_permlane32_swap_b32 v{P+1}, v{P+3}", "perm", rd={P + 1, P + 3}, wr={P + 1, P + 3}))
        e.nop(1)
        pol = self.o.stpol
        e.emit(Ins(f"buffer_store_dwordx4 {vr(P,4)}, v{vQsrc}, s[{sOut}:{sOut+3}], s{sQoff} offen{pol}", "vstore", rd=R(P, 4) | {vQsrc}))
        e.salu("s_mov_b64 exec, 0xffffffff")
        e.emit(Ins(f"buffer_store_dword v{P+4}, v{vQsrc}, s[{sOut}:{sOut+3}], s{sQoff} offen offset:32{pol}", "vstore", rd={P + 4, vQsrc}))

    def check(self):
        e = self.e
        O = vOe; L = O + 12
        t = vT
        e.valu(f"v_mul_f32 v{t[0]}, 0, v{O}", wr={t[0]}, rd={O})
        e.valu(f"v_mul_f32 v{t[1]}, 0, v{O+1}", wr={t[1]}, rd={O + 1})
        for i in range(2, 10):
            r = t[i & 1]
            e.valu(f"v_fma_f32 v{r}, v{O+i}, 0, v{r}", wr={r}, rd={O + i, r})
        e.salu(f"s_mov_b32 s{sTmp}, 0x{f32bits(2.0**-60):08x}")
        e.salu(f"s_mov_b32 s{sTmp+1}, 0x{f32bits(2.0**60):08x}")
        e.valu(f"v_add_f32 v{t[0]}, v{t[0]}, v{t[1]}", wr={t[0]}, rd={t[0], t[1]})
        e.valu(f"v_cmp_le_f32 s[4:5], s{sTmp}, v{L}", rd={L}, sw={"s4"})
        e.valu(f"v_cmp_ge_f32 s[6:7], s{sTmp+1}, v{L}", rd={L}, sw={"s6"})
        e.valu(f"v_cmp_eq_f32 vcc, 0, v{t[0]}", rd={t[0]}, sw={"vcc"})
        e.nop(1)
        e.salu("s_and_b64 s[4:5], s[4:5], s[6:7]", sr={"s4", "s6"})
        e.salu("s_and_b64 s[4:5], s[4:5], vcc", sr={"vcc"})
        e.salu("s_cmp_eq_u64 s[4:5], -1")
        if not self.o.nocheck: e.other("s_cbranch_scc0 L_fallback")

    def fallback(self):
        e = self.e
        e.label("L_fallback")
        e.reset_hist()
        A0, A1, KRp = vKA[0][0], vKA[0][1], vKR[0]
        X = SB[0]
        ka, kr, va, vd = vT[2], vT[3], vT[4], vT[5]
        def W(text): e.raw("    " + text)
        W(f"v_mov_b32 v{vB2z}, v{vB2}")
        W(f"v_mov_b32 v{vB2z+1}, 0")
        W(f"v_mov_b32 v{vM}, 0xff800000")
        def scores():
            W(f"ds_read_b64 {vr(A0,2)}, v{ka} offset:40")
            W(f"ds_read_b64 {vr(A0+2,2)}, v{ka} offset:48")
            W(f"ds_read_b64 {vr(A1,2)}, v{ka}")
            W(f"ds_read_b64 {vr(A1+2,2)}, v{ka} offset:8")
            W(f"ds_read_b32 v{KRp}, v{kr}")
            W("s_waitcnt lgkmcnt(0)")
            W(f"v_mfma_f32_32x32x16_bf16 {vr(X,16)}, {vr(A0,4)}, {vr(vQo,4)}, 0")
            W(f"v_mfma_f32_32x32x16_bf16 {vr(X+16,16)}, {vr(A1,4)}, {vr(vQe,4)}, 0")
            W("s_nop 15")
            W(f"v_mfma_f32_32x32x4_2b_bf16 {vr(X,32)}, {vr(KRp,2)}, {vr(vB2z,2)}, {vr(X,32)}")
            W("s_nop 15"); W("s_nop 7")
        W(f"v_mov_b32 v{ka}, v{vKa[0]}")
        W(f"v_mov_b32 v{kr}, v{vKr[0]}")
        W(f"s_mov_b32 s{sFb}, 32")
        e.label("L_fb1")
        scores()
        for i in range(0, 32, 2):
            W(f"v_max3_f32 v{vM}, v{vM}, v{X+i}, v{X+i+1}")
        W(f"v_add_u32 v{ka}, {BLK}, v{ka}")
        W(f"v_add_u32 v{kr}, {BLK}, v{kr}")
        W(f"s_sub_u32 s{sFb}, s{sFb}, 1")
        W(f"s_cmp_lg_u32 s{sFb}, 0")
        W("s_cbranch_scc1 L_fb1")
        W(f"v_mov_b32 v{vM+1}, v{vM}")
        W("s_nop 1")
        W(f"v_permlane32_swap_b32 v{vM}, v{vM+1}")
        W("s_nop 1")
        W(f"v_max_f32 v{vM}, v{vM}, v{vM+1}")
        for i in range(16):
            W(f"v_mov_b32 v{vOo+i}, 0"); W(f"v_mov_b32 v{vOe+i}, 0")
        W(f"v_mov_b32 v{ka}, v{vKa[0]}")
        W(f"v_mov_b32 v{kr}, v{vKr[0]}")
        W(f"v_mov_b32 v{va}, v{vVa[0]}")
        W(f"v_sub_u32 v{vd}, v{vVa[1]}, v{vVa[0]}")
        W(f"v_lshrrev_b32 v{vd}, 2, v{vd}")
        W(f"s_mov_b32 s{sFb}, 32")
        e.label("L_fb2")
        VF = vVF[0]
        for g in range(4):
            for s2 in range(2):
                off = 1152 * (g & 1) + 288 * s2 + (32 if g < 2 else 0)
                W(f"ds_read_b64_tr_b16 {vr(VF+4*g+2*s2,2)}, v{va} offset:{off}")
        scores()
        for i in range(32):
            W(f"v_sub_f32 v{X+i}, v{X+i}, v{vM}")
        for i in range(32):
            W(f"v_exp_f32 v{X+i}, v{X+i}")
        W("s_nop 1")
        for g in range(4):
            O = vOo if g < 2 else vOe
            W(f"v_smfmac_f32_32x32x32_bf16 {vr(O,16)}, {vr(VF+4*g,4)}, {vr(X+8*g,8)}, v{vIDX}")
        W("s_nop 7")
        W(f"v_add_u32 v{ka}, {BLK}, v{ka}")
        W(f"v_add_u32 v{kr}, {BLK}, v{kr}")
        W(f"v_add_u32 v{va}, v{vd}, v{va}")
        W(f"s_sub_u32 s{sFb}, s{sFb}, 1")
        W(f"s_cmp_lg_u32 s{sFb}, 0")
        W("s_cbranch_scc1 L_fb2")
        W("s_nop 15")
        W(f"s_mov_b32 s{sFb+1}, 1")
        W("s_branch L_combine")

    def spinloops(self):
        e = self.e
        for g in self.spins:
            e.label(f"L_spin{g}")
            e.raw(f"    ds_read_b32 v{vFlagV}, v{vFlagR} offset:{32*g}")
            e.raw("    s_waitcnt lgkmcnt(0)")
            e.raw(f"    v_cmp_ne_u32 vcc, v{vIDX}, v{vFlagV}")
            e.raw("    s_nop 1")
            e.raw(f"    s_cbranch_vccnz L_spin{g}")
            e.raw(f"    s_branch L_back{g}")

    def dump_stamps(self):
        if not self.o.stamps: return
        e = self.e
        n = self.nstamp
        W = lambda t: e.raw("    " + t)
        W("s_mov_b64 exec, 1")
        W("s_and_b32 s15, s15, 0xffff")
        W("s_mov_b32 s4, s14"); W("s_mov_b32 s5, s15"); W("s_mov_b32 s6, 0x1000000"); W("s_mov_b32 s7, 0x20000")
        W("s_lshl_b32 s8, s2, 3"); W(f"s_add_u32 s8, s8, s{sW}"); W("s_lshl_b32 s8, s8, 7")
        for i in range(n):
            W(f"s_sub_u32 s9, s{sStamp+2*i}, s{sStamp}")
            W("v_mov_b32 v1, s9")
            W(f"v_mov_b32 v2, {4*i}")
            W("buffer_store_dword v1, v2, s[4:7], s8 offen")
            W("s_nop 1")
        W("s_sub_u32 s9, s98, s96")
        W("v_mov_b32 v1, s9")
        W(f"v_mov_b32 v2, {4*n}")
        W("buffer_store_dword v1, v2, s[4:7], s8 offen")
        W("s_nop 1")
        W("v_mov_b32 v1, s96")
        W(f"v_mov_b32 v2, {4*n+4}")
        W("buffer_store_dword v1, v2, s[4:7], s8 offen")
        W("s_nop 1")
        W("v_mov_b32 v1, s98")
        W(f"v_mov_b32 v2, {4*n+8}")
        W("buffer_store_dword v1, v2, s[4:7], s8 offen")
        W("s_waitcnt vmcnt(0)")
        self.stampnames += ["rt", "rt0", "rt1"]

    def build(self):
        e = self.e; o = self.o
        self.build_hooks()
        self.prologue()
        for b in range(32):
            self.iteration(b)
            if o.stamps and (f"it{b}" in o.stampsel):
                self.stamp(f"it{b}")
        e.nop(2)
        self.mm_pv(31, 3)
        self.stamp("loop")
        e.salu(f"s_mov_b32 s{sFb+1}, 0")
        if o.force_fb:
            e.nop(16)
            e.other("s_branch L_fallback")
        e.label("L_combine")
        self.combine()
        e.salu(f"s_cmp_lg_u32 s{sFb+1}, 0")
        e.other("s_cbranch_scc1 L_store")
        self.check()
        e.label("L_store")
        self.epilogue()
        if o.repeat > 1:
            e.raw("    s_mov_b64 exec, -1")
            e.raw("    s_waitcnt vmcnt(0) lgkmcnt(0)")
            e.raw("    s_barrier")
            e.raw("    s_sub_u32 s50, s50, 1")
            e.raw("    s_cmp_lg_u32 s50, 0")
            e.raw("    s_cbranch_scc1 L_again")
        self.stamp("end")
        self.dump_stamps()
        e.label("L_end")
        e.raw("    s_endpgm")
        self.spinloops()
        self.fallback()
        body = e.text()
        if o.align:
            import alignpass
            body, msg = alignpass.align(body, mode=o.align - 1)
            e.log.append(msg)
        src = HEADER
        src += "; Override launch geometry by editing the next line (default: block=256,\n; grid=ceil(out_elems/256), lds=0). Harness parses it; keep it on one line.\n"
        src += f"; @launch grid=(256,1,1) block=(512,1,1) lds={LDS_BYTES}\n"
        src += f""".amdgcn_target "amdgcn-amd-amdhsa--gfx950"
.text
.globl {NAME}_kernel
.p2align 8
.type {NAME}_kernel,@function
{NAME}_kernel:
{body}.section .rodata,"a"
.p2align 6
.amdhsa_kernel {NAME}_kernel
  .amdhsa_next_free_vgpr {vNV}
  .amdhsa_next_free_sgpr 102
  .amdhsa_accum_offset {vNV}
  .amdhsa_group_segment_fixed_size 0
  .amdhsa_kernarg_size 48
  .amdhsa_user_sgpr_count 2
  .amdhsa_user_sgpr_kernarg_segment_ptr 1
  .amdhsa_system_sgpr_workgroup_id_x 1
.end_amdhsa_kernel
"""
        return src

def get_opts(argv=None):
    p = argparse.ArgumentParser()
    p.add_argument("-o", default="cdna_kernels/" + NAME + ".s")
    p.add_argument("--stamps", type=int, default=0)
    p.add_argument("--stampsel", default="")
    p.add_argument("--force_fb", type=int, default=0)
    p.add_argument("--nocheck", type=int, default=0)
    p.add_argument("--rot", type=int, default=0)
    p.add_argument("--ordbar", type=int, default=1)
    p.add_argument("--sync", default="flag")
    p.add_argument("--nodma", type=int, default=0)
    p.add_argument("--nolds", type=int, default=0)
    p.add_argument("--mpos", default="2,4,12,18,22,26,29")
    p.add_argument("--rdpos", default="2,2,4,4,12,12,18,18,22,22,26,26,29")
    p.add_argument("--waits", default="4:2,22:9")
    p.add_argument("--dsched", default="0:0,1:2,3:4,5:6,7:8,9:10,11:12")
    p.add_argument("--dpos", default="23,27")
    p.add_argument("--groups", default="1;0;1/2;3;5/3,4;6;8/5,6;10;15/7,8;14;22")
    p.add_argument("--ppos", type=int, default=30)
    p.add_argument("--fpos", type=int, default=29)
    p.add_argument("--stpol", default="")
    p.add_argument("--repeat", type=int, default=1)
    p.add_argument("--align", type=int, default=0)
    p.add_argument("--prio", default="")
    o = p.parse_args(argv)
    o.stampsel = [x for x in o.stampsel.split(",") if x]
    o.rdpos = [int(x) for x in o.rdpos.split(",")]
    o.mpos = [int(x) for x in o.mpos.split(",")]
    o.dpos = [int(x) for x in o.dpos.split(",")]
    o.waits = [tuple(int(y) for y in x.split(":")) for x in o.waits.split(",") if x]
    o.dsched = [tuple(int(y) for y in x.split(":")) for x in o.dsched.split(",")]
    o.groups = [([int(r) for r in g.split(";")[0].split(",")], int(g.split(";")[1]), int(g.split(";")[2])) for g in o.groups.split("/")]
    if o.stpol: o.stpol = " " + o.stpol.replace("+", " ")
    return o

if __name__ == "__main__":
    o = get_opts()
    g = Gen(o)
    src = g.build()
    open(o.o, "w").write(src)
    print("instructions:", g.e.nins, "nop states:", g.e.nops, "bytes src:", len(src))
    for l in g.e.log[:60]: print("  ", l)
    if o.stamps: print("stamps:", ",".join(g.stampnames))
```

```python
import sys, os, argparse, struct
sys.path.insert(0, os.path.dirname(os.path.abspath(__file__)))
from asmlib import *

NAME = "standalone__fused_io_aware_attn__prompt"
HEADER = open("cdna_kernels/" + NAME + ".s.ref").read().split("; Override launch")[0]

HEAD_BYTES = 2048 * 36
TENSOR_BYTES = 32 * HEAD_BYTES
BLK = 64 * 36
KM = 0
VM = HEAD_BYTES
ONES = 2 * HEAD_BYTES
FLAG = ONES + 9216
LDS_BYTES = FLAG + 256

vLANE, vQsrc, vDsrc = 1, 2, 3
vKa = [4, 5]; vKr = [6, 7]
vVa = list(range(8, 16))
vIDX, vFlagR, vFlagW, vFlagV = 16, 17, 18, 19
vT = list(range(20, 32))
SB = [32, 64]
vOo, vOe = 96, 112
vKA = [[128, 132], [136, 140]]
vKR = [144, 146]
vQo, vQe, vB2 = 148, 152, 156
vVF = [160, 176]
vQraw = 176
vK0raw = 184
vPF = 196
vB2z, vM = 192, 194
vNV = 200

sW = 3
sQ, sK, sV, sOut = 16, 20, 24, 28
sDst = 32
sQoff = 33
sSrc = list(range(34, 43))
sTmp = 44
sFb = 48
sA, sB = 52, 56
sAoff, sBoff = 4, 5
sHm = 6
sStamp = 60

C_SCALE = 1.4426950408889634 / (18.0 ** 0.5)
def f32bits(x): return struct.unpack("<I", struct.pack("<f", x))[0]

class Gen:
    def __init__(self, opt):
        self.o = opt
        self.e = Emitter()
        self.nstamp = 0
        self.stampnames = []
        self.spins = []

    def stamp(self, name):
        if not self.o.stamps: return
        if self.o.stampsel and name not in self.o.stampsel and name not in ("start", "end"): return
        e = self.e
        i = self.nstamp; self.nstamp += 1
        s = sStamp + 2 * i
        assert s + 1 < 94
        e.wait(lgkm=0)
        e.other(f"s_memtime s[{s}:{s+1}]")
        if name == "start": e.other("s_memrealtime s[96:97]")
        if name == "end": e.other("s_memrealtime s[98:99]")
        e.raw("    s_waitcnt lgkmcnt(0)")
        self.stampnames.append(name)

    def lstamp(self, name):
        i = self.nstamp; self.nstamp += 1
        s = sStamp + 2 * i
        assert s + 1 < 94
        self.e.raw(f"    s_memtime s[{s}:{s+1}]")
        self.stampnames.append(name)

    def cbar(self, tag, young):
        e = self.e
        idx = -1
        for i, (tg, r) in enumerate(e.vm):
            if tg == tag: idx = i
        self.ncb = getattr(self, "ncb", 0) + 1
        lab = f"L_cb{self.ncb}"
        e.other(f"s_cbranch_vcc{'z' if young else 'nz'} {lab}")
        if idx >= 0:
            n = len(e.vm) - 1 - idx
            e.raw(f"    s_waitcnt vmcnt({n})")
            if not young: e.vm = e.vm[len(e.vm) - n:] if n else []
        e.raw("    s_barrier")
        e.label(lab)

    def m0_set(self, tens, r):
        base = (KM if tens == "k" else VM) + r * 8192
        self.e.salu(f"s_add_u32 m0, s{sDst}, {base}", sw={"m0"})
    def dma(self, tens, r, tag):
        srd = sK if tens == "k" else sV
        self.e.emit(Ins(f"buffer_load_dwordx4 v{vDsrc}, s[{srd}:{srd+3}], s{sSrc[r]} offen{self.o.r1pol if r == 1 else self.o.kvpol} lds", "dma", rd={vDsrc}), tag=tag)

    def rd_k(self, b, t, half):
        if self.o.k128:
            if half: return
            d = vKA[b & 1][t]
            off = (b % 16) * BLK + (40 if t == 0 else 0)
            a = vKa[b // 16]
            self.e.emit(Ins(f"ds_read_b128 {vr(d,4)}, v{a} offset:{off}", "ds_read", rd={a}, wr=R(d, 4)))
            return
        d = vKA[b & 1][t] + 2 * half
        off = (b % 16) * BLK + (40 if t == 0 else 0) + 8 * half
        a = vKa[b // 16]
        self.e.emit(Ins(f"ds_read_b64 {vr(d,2)}, v{a} offset:{off}", "ds_read", rd={a}, wr=R(d, 2)))
    def rd_kr(self, b):
        d = vKR[b & 1]; a = vKr[b // 16]
        self.e.emit(Ins(f"ds_read_b32 v{d}, v{a} offset:{(b % 16) * BLK}", "ds_read", rd={a}, wr={d}))
    def rd_v(self, b, g, s2):
        d = vVF[b & 1] + 4 * g + 2 * s2
        t = g >> 1
        off = (b % 4) * BLK + 1152 * (g & 1) + 288 * s2 + (32 if t == 0 else 0)
        a = vVa[b // 4]
        self.e.emit(Ins(f"ds_read_b64_tr_b16 {vr(d,2)}, v{a} offset:{off}", "ds_read", rd={a}, wr=R(d, 2)))
    def mm_main(self, b, t, czero=False):
        D = SB[b & 1] + 16 * t; A = vKA[b & 1][t]; B = vQo if t == 0 else vQe
        if czero:
            self.e.emit(Ins(f"v_mfma_f32_32x32x16_bf16 {vr(D,16)}, {vr(A,4)}, {vr(B,4)}, 0", "mfma",
                            rd=R(A, 4) | R(B, 4), wr=R(D, 16), passes=8))
        else:
            self.e.emit(Ins(f"v_mfma_f32_32x32x16_bf16 {vr(D,16)}, {vr(A,4)}, {vr(B,4)}, {vr(D,16)}", "mfma",
                            rd=R(A, 4) | R(B, 4), wr=R(D, 16), srcc=R(D, 16), passes=8))
    def mm_rem(self, b, czero=True):
        D = SB[b & 1]; A = vKR[b & 1]; B = vB2
        if czero:
            self.e.emit(Ins(f"v_mfma_f32_32x32x4_2b_bf16 {vr(D,32)}, {vr(A,2)}, {vr(B,2)}, 0", "mfma",
                            rd=R(A, 2) | R(B, 2), wr=R(D, 32), passes=16))
        else:
            self.e.emit(Ins(f"v_mfma_f32_32x32x4_2b_bf16 {vr(D,32)}, {vr(A,2)}, {vr(B,2)}, {vr(D,32)}", "mfma",
                            rd=R(A, 2) | R(B, 2), wr=R(D, 32), srcc=R(D, 32), passes=16))
    def mm_pv(self, b, g):
        A = vVF[b & 1] + 4 * g; B = SB[b & 1] + 8 * g
        O = vOo if g < 2 else vOe
        self.e.emit(Ins(f"v_smfmac_f32_32x32x32_bf16 {vr(O,16)}, {vr(A,4)}, {vr(B,8)}, v{vIDX}", "mfma",
                        rd=R(A, 4) | R(B, 8) | {vIDX}, wr=R(O, 16), srcc=R(O, 16), passes=8))
    def ex(self, b, i):
        r = SB[b & 1] + i
        self.e.trans(f"v_exp_f32 v{r}, v{r}", wr={r}, rd={r})

    def post(self, g, tag):
        e = self.e
        e.wait_vm_tag(tag)
        if self.o.sync == "flag":
            e.emit(Ins(f"ds_write_b32 v{vFlagW}, v{vIDX} offset:{32*g}", "ds_write", rd={vFlagW, vIDX}))
    def flag_read(self, g):
        if self.o.sync == "flag":
            self.e.emit(Ins(f"ds_read_b32 v{vFlagV}, v{vFlagR} offset:{32*g}", "ds_read", rd={vFlagR}, wr={vFlagV}))
    def flag_check(self, g):
        e = self.e
        if self.o.sync == "flag":
            e.valu(f"v_cmp_ne_u32 vcc, v{vIDX}, v{vFlagV}", rd={vIDX, vFlagV}, sw={"vcc"})
            self.pending_branch = g
        elif self.o.sync == "bar":
            e.other("s_barrier")
    def flag_branch(self, g):
        e = self.e
        if self.o.sync == "flag":
            e.other(f"s_cbranch_vccnz L_spin{g}")
            e.label(f"L_back{g}")
            self.spins.append(g)

    def prologue(self):
        e = self.e; o = self.o
        t0, t1, t2, t3 = vT[0:4]
        vK0 = vT[4]
        e.salu("s_cmp_ge_u32 s2, 0x100")
        e.other("s_cbranch_scc1 L_end")
        if o.stamps: self.stamp("start")
        for (srd, off) in ((sQ, 0), (sK, 8), (sV, 16), (sOut, 24)):
            e.other(f"s_load_dwordx2 s[{srd}:{srd+1}], s[0:1], {off}")
        if o.stamps:
            e.other("s_load_dwordx2 s[14:15], s[0:1], 40")
        if o.repeat > 1:
            e.salu(f"s_mov_b32 s50, {o.repeat}")
            e.label("L_again")
        nk = o.nk
        e.valu(f"v_lshrrev_b32 v{t2}, 6, v0", wr={t2}, rd={0})
        e.valu(f"v_and_b32 v{vLANE}, 63, v0", wr={vLANE}, rd={0})
        e.emit(Ins(f"v_readfirstlane_b32 s{sW}, v{t2}", "valu", rd={t2}, sw={f"s{sW}"}))
        e.salu("s_and_b32 s12, s2, 7")
        e.salu("s_lshr_b32 s8, s2, 6")
        e.valu(f"v_lshlrev_b32 v{vDsrc}, 4, v{vLANE}", wr={vDsrc}, rd={vLANE})
        e.salu("s_lshl2_add_u32 s12, s12, s8")
        e.salu("s_bfe_u32 s13, s2, 0x30003")
        e.valu(f"v_and_b32 v{t0}, 31, v{vLANE}", wr={t0}, rd={vLANE})
        e.salu(f"s_mul_i32 s12, s12, {HEAD_BYTES}")
        e.salu(f"s_lshl_b32 s{sDst}, s{sW}, 10", sr={f"s{sW}"})
        e.valu(f"v_lshrrev_b32 v{t1}, 5, v{vLANE}", wr={t1}, rd={vLANE})
        e.salu(f"s_cmp_lt_u32 s{sW}, {nk}")
        e.salu(f"s_cselect_b32 s8, 0, {-nk*1024}")
        e.salu(f"s_cselect_b32 s9, {KM}, {VM - nk*1024}")
        e.salu(f"s_add_u32 s{sSrc[0]}, s{sDst}, s12")
        e.valu(f"v_mul_u32_u24 v{t2}, 36, v{t0}", wr={t2}, rd={t0})
        e.salu(f"s_add_u32 m0, s{sDst}, s9", sw={"m0"})
        e.salu(f"s_add_u32 s{sAoff}, s{sSrc[0]}, s8")
        e.valu(f"v_lshlrev_b32 v{vK0}, 4, v{t1}", wr={vK0}, rd={t1})
        e.salu(f"s_mov_b32 s{sA+2}, {TENSOR_BYTES}")
        e.salu(f"s_mov_b32 s{sA+3}, 0x20000")
        e.valu(f"v_add_u32 v{vQsrc}, v{vK0}, v{t2}", wr={vQsrc}, rd={vK0, t2})
        e.salu(f"s_mul_i32 s13, s13, {256*36}")
        e.salu(f"s_mul_i32 s9, s{sW}, 1152")
        e.salu(f"s_mov_b32 s{sQ+2}, {TENSOR_BYTES}")
        e.salu(f"s_add_u32 s{sQoff}, s13, s9")
        e.salu(f"s_mov_b32 s{sQ+3}, 0x20000")
        e.salu(f"s_add_u32 s{sQoff}, s{sQoff}, s12")
        e.salu(f"s_cmp_lt_u32 s{sW}, {nk}")
        e.raw("    s_waitcnt lgkmcnt(0)")
        e.hist.append(Ins("w", "other"))
        e.salu(f"s_cselect_b32 s{sA}, s{sK}, s{sV}")
        e.salu(f"s_cselect_b32 s{sA+1}, s{sK+1}, s{sV+1}")
        self.stamp("karg")
        def ld(d, n, a, srd, so, off, tag):
            sfx = {4: "x4", 1: ""}[n]
            e.emit(Ins(f"buffer_load_dword{sfx} {vr(d,n)}, v{a}, s[{srd}:{srd+3}], s{so} offen" + (f" offset:{off}" if off else "") + o.qpol, "vload", rd={a}, wr=R(d, n)), tag=tag)
        first = True
        for tok in o.ord:
            if tok == "A":
                assert first or o.ord[0] != "B"
                e.emit(Ins(f"buffer_load_dwordx4 v{vDsrc}, s[{sA}:{sA+3}], s{sAoff} offen{o.apol} lds", "dma", rd={vDsrc}), tag="A")
            elif tok == "B":
                e.salu(f"s_cmp_lt_u32 s{sW}, {8-nk}")
                e.salu(f"s_cselect_b32 s8, {nk*1024}, 0")
                assert KM == 0
                e.salu(f"s_cselect_b32 s9, s8, {VM}")
                e.salu(f"s_cselect_b32 s{sB}, s{sK}, s{sV}")
                e.salu(f"s_cselect_b32 s{sB+1}, s{sK+1}, s{sV+1}")
                e.salu(f"s_mov_b32 s{sB+2}, {TENSOR_BYTES}")
                e.salu(f"s_add_u32 m0, s{sDst}, s9", sw={"m0"})
                e.salu(f"s_mov_b32 s{sB+3}, 0x20000")
                e.salu(f"s_add_u32 s{sBoff}, s{sSrc[0]}, s8")
                e.emit(Ins(f"buffer_load_dwordx4 v{vDsrc}, s[{sB}:{sB+3}], s{sBoff} offen{o.bpol} lds", "dma", rd={vDsrc}), tag="B")
            elif tok == "Q":
                ld(vQraw, 4, vQsrc, sQ, sQoff, 0, "q")
                ld(vQraw + 4, 1, vQsrc, sQ, sQoff, 16, "q")
            elif tok == "bar":
                e.other("s_barrier")
            elif tok in ("K1", "V1"):
                t = tok[0].lower()
                self.m0_set(t, 1)
                self.dma(t, 1, "g1" if (tok == "K1" or not o.splitg1) else "g1v")
            elif tok == "S":
                self.setup()
            first = False
        self.stamp("setup")
        if o.diag:
            n = len(e.vm)
            for i in range(n):
                e.raw(f"    s_waitcnt vmcnt({n-1-i})")
                self.stamp(f"d{i}")
        self.prologue2()

    def setup(self):
        e = self.e; o = self.o
        t0, t1, t2, t3 = vT[0:4]
        vK0 = vT[4]
        for srd in (sK, sV, sOut):
            e.salu(f"s_mov_b32 s{srd+2}, {TENSOR_BYTES}")
            e.salu(f"s_mov_b32 s{srd+3}, 0x20000")
        e.valu(f"v_mul_u32_u24 v{t2}, 72, v{t0}", wr={t2}, rd={t0})
        e.valu(f"v_add_u32 v{vKa[0]}, v{vK0}, v{t2}", wr={vKa[0]}, rd={vK0, t2})
        e.valu(f"v_lshlrev_b32 v{t3}, 2, v{t1}", wr={t3}, rd={t1})
        e.valu(f"v_sub_u32 v{t3}, v{t2}, v{t3}", wr={t3}, rd={t2, t3})
        e.valu(f"v_add_u32 v{vKr[0]}, 36, v{t3}", wr={vKr[0]}, rd={t3})
        e.valu(f"v_add_u32 v{vKa[1]}, {16*BLK}, v{vKa[0]}", wr={vKa[1]}, rd={vKa[0]})
        e.valu(f"v_add_u32 v{vKr[1]}, {16*BLK}, v{vKr[0]}", wr={vKr[1]}, rd={vKr[0]})
        for r in range(1, 9):
            e.salu(f"s_add_u32 s{sSrc[r]}, s{sSrc[0]}, {r*8192}")
        a, b2, c2 = vT[5], vT[6], vT[7]
        e.valu(f"v_bfe_u32 v{t0}, v{vLANE}, 2, 2", wr={t0}, rd={vLANE})
        e.valu(f"v_mul_u32_u24 v{t0}, 72, v{t0}", wr={t0}, rd={t0})
        e.valu(f"v_mul_u32_u24 v{t2}, 576, v{t1}", wr={t2}, rd={t1})
        e.valu(f"v_and_b32 v{b2}, 3, v{vLANE}", wr={b2}, rd={vLANE})
        e.valu(f"v_bfe_u32 v{t3}, v{vLANE}, 4, 1", wr={t3}, rd={vLANE})
        e.valu(f"v_add3_u32 v{t0}, v{t0}, v{t2}, s{sTmp}", wr={t0}, rd={t0, t2}) if False else e.valu(f"v_add_u32 v{t0}, v{t0}, v{t2}", wr={t0}, rd={t0, t2})
        e.valu(f"v_lshl_add_u32 v{b2}, v{t3}, 2, v{b2}", wr={b2}, rd={t3, b2})
        e.valu(f"v_lshl_add_u32 v{t0}, v{b2}, 3, v{t0}", wr={t0}, rd={b2, t0})
        e.valu(f"v_add_u32 v{t0}, {VM}, v{t0}", wr={t0}, rd={t0})
        e.valu(f"v_lshlrev_b32 v{a}, 6, v{t1}", wr={a}, rd={t1})
        e.valu(f"v_cmp_eq_u32 vcc, 5, v{b2}", rd={b2}, sw={"vcc"})
        e.valu(f"v_add_u32 v{c2}, {ONES + 48}, v{a}", wr={c2}, rd={a})
        e.valu(f"v_add_u32 v{a}, {ONES + (40 if o.lrows == 2 else 48)}, v{a}", wr={a}, rd={a})
        e.valu(f"v_cndmask_b32 v{a}, v{c2}, v{a}, vcc", wr={a}, rd={a, c2}, sr={"vcc"})
        e.valu(f"v_cmp_lt_u32 vcc, 4, v{b2}", rd={b2}, sw={"vcc"})
        P = vT[8]
        assert P % 4 == 0
        e.valu(f"v_mov_b32 v{P}, 0x3f80", wr={P})
        e.valu(f"v_mov_b32 v{P+1}, 0", wr={P + 1})
        e.valu(f"v_cndmask_b32 v{vVa[0]}, v{t0}, v{a}, vcc", wr={vVa[0]}, rd={t0, a}, sr={"vcc"})
        e.valu(f"v_mov_b32 v{t2}, {4*BLK}", wr={t2})
        e.valu(f"v_cndmask_b32 v{t2}, v{t2}, v{P+1}, vcc", wr={t2}, rd={t2, P + 1}, sr={"vcc"})
        e.valu(f"v_mov_b32 v{P+2}, 0", wr={P + 2})
        e.valu(f"v_mov_b32 v{P+3}, 0", wr={P + 3})
        for c in range(1, 8):
            e.valu(f"v_add_u32 v{vVa[c]}, v{vVa[c-1]}, v{t2}", wr={vVa[c]}, rd={vVa[c-1], t2})
        e.valu(f"v_add_u32 v{a}, s{sDst}, v{vDsrc}", wr={a}, rd={vDsrc})
        e.valu(f"v_add_u32 v{b2}, {ONES + 8192}, v{vDsrc}", wr={b2}, rd={vDsrc})
        e.valu(f"v_add_u32 v{a}, {ONES}, v{a}", wr={a}, rd={a})
        e.emit(Ins(f"ds_write_b128 v{b2}, {vr(P,4)}", "ds_write", rd={b2} | R(P, 4)))
        e.emit(Ins(f"ds_write_b128 v{a}, {vr(P,4)}", "ds_write", rd={a} | R(P, 4)))
        e.valu(f"v_mov_b32 v{vIDX}, 0xdddddddd", wr={vIDX})
        e.valu(f"v_mov_b32 v{vKR[0]+1}, 0x3f803f80", wr={vKR[0] + 1})
        e.valu(f"v_mov_b32 v{vKR[1]+1}, 0x3f803f80", wr={vKR[1] + 1})
        assert vOe == vOo + 16
        e.emit(Ins(f"v_mfma_f32_32x32x4_2b_bf16 {vr(vOo,32)}, {vr(P+2,2)}, {vr(P+2,2)}, 0", "mfma", rd=R(P + 2, 2), wr=R(vOo, 32), passes=16))
        e.salu(f"s_mov_b32 s{sTmp+1}, 0x{f32bits(C_SCALE):08x}")
        e.salu(f"s_mov_b32 s{sTmp+2}, 0xffff0000")
        e.salu(f"s_mov_b32 s{sHm}, 0")
        e.salu(f"s_mov_b32 s{sHm+1}, -1")
        e.salu(f"s_cmp_ge_u32 s{sW}, 4")
        e.salu("s_cselect_b64 vcc, -1, 0", sw={"vcc"})

    def prologue2(self):
        e = self.e; o = self.o
        vK0 = vT[4]
        hm = f"s[{sHm}:{sHm+1}]"
        def sc(j):
            a, b2 = (vT[6], vT[7]) if j & 1 else (vT[2], vT[3])
            if j == 4: a, b2 = vT[8], vT[9]
            L = []
            L.append(lambda: e.valu(f"v_lshlrev_b32 v{a}, 16, v{vQraw+j}", wr={a}, rd={vQraw + j}))
            L.append(lambda: e.valu(f"v_and_b32 v{b2}, s{sTmp+2}, v{vQraw+j}", wr={b2}, rd={vQraw + j}))
            L.append(lambda: e.valu(f"v_mul_f32 v{a}, s{sTmp+1}, v{a}", wr={a}, rd={a}))
            L.append(lambda: e.valu(f"v_mul_f32 v{b2}, s{sTmp+1}, v{b2}", wr={b2}, rd={b2}))
            if j < 4: L.append(lambda: e.valu(f"v_cvt_pk_bf16_f32 v{vQe+j}, v{a}, v{b2}", wr={vQe + j}, rd={a, b2}))
            if j > 0: L.append(lambda: e.valu(f"v_cvt_pk_bf16_f32 v{vQo+j-1}, v{a}, v{b2}", wr={vQo + j - 1}, rd={a, b2}))
            return L
        self.stamp("qdone")
        e.wait_vm_tag("A")
        e.wait(lgkm=0)
        e.other("s_barrier")
        self.stamp("B0a")
        e.emit(Ins(f"ds_read_b128 {vr(vK0raw,4)}, v{vK0} offset:{KM}", "ds_read", rd={vK0}, wr=R(vK0raw, 4)))
        e.emit(Ins(f"ds_read_b32 v{vK0raw+4}, v{vK0} offset:{KM+16}", "ds_read", rd={vK0}, wr={vK0raw + 4}))
        self.rd_kr(0)
        self.rd_k(0, 0, 0); self.rd_k(0, 0, 1)
        self.rd_k(0, 1, 0); self.rd_k(0, 1, 1)
        self.rd_kr(1)
        self.rd_k(1, 0, 0); self.rd_k(1, 0, 1)
        self.rd_k(1, 1, 0); self.rd_k(1, 1, 1)
        e.wait(lgkm=7)
        for g in range(4):
            for s2 in range(2): self.rd_v(0, g, s2)
        e.valu(f"v_cndmask_b32 v{vK0raw+4}, 0, v{vK0raw+4}, {hm}", wr={vK0raw + 4}, rd={vK0raw + 4})
        m0r, m1r = vT[0], vT[1]
        def dot(d, j, acc):
            e.valu(f"v_dot2_f32_bf16 v{d}, v{vQraw+j}, v{vK0raw+j}, {acc}", wr={d}, rd={vQraw + j, vK0raw + j} | ({d} if acc != "0" else set()))
        s0, s4 = sc(0), sc(4)
        dot(m0r, 0, "0"); dot(m1r, 1, "0")
        s0[0](); s0[1]()
        dot(m0r, 2, f"v{m0r}"); dot(m1r, 3, f"v{m1r}")
        s0[2](); s0[3]()
        s4[0]()
        dot(m0r, 4, f"v{m0r}")
        s4[1](); s0[4](); s4[2](); s4[3]()
        e.valu(f"v_add_f32 v{m0r}, v{m0r}, v{m1r}", wr={m0r}, rd={m0r, m1r})
        s4[4]()
        e.valu(f"v_mov_b32 v{m1r}, v{m0r}", wr={m1r}, rd={m0r})
        s1, s2_, s3 = sc(1), sc(2), sc(3)
        e.valu(f"v_cndmask_b32 v{vB2}, v{vQe}, v{vQo+3}, {hm}", wr={vB2}, rd={vQe, vQo + 3})
        s1[0]()
        e.emit(Ins(f"v_permlane32_swap_b32 v{m0r}, v{m1r}", "perm", rd={m0r, m1r}, wr={m0r, m1r}))
        s1[1](); s1[2]()
        e.valu(f"v_add_f32 v{m0r}, v{m0r}, v{m1r}", wr={m0r}, rd={m0r, m1r})
        s1[3]()
        e.valu(f"v_mul_f32 v{m0r}, s{sTmp+1}, v{m0r}", wr={m0r}, rd={m0r})
        s1[4]()
        e.valu(f"v_cvt_pk_bf16_f32 v{vB2+1}, -v{m0r}, 0", wr={vB2 + 1}, rd={m0r})
        s1[5]()
        s2_[0]()
        self.stamp("qsc")
        self.mm_rem(0, czero=True)
        for f in s2_[1:]: f()
        for f in s3: f()
        if o.asym and o.bcy == -2: self.cbar("B", True)
        self.mm_main(0, 0)
        self.mm_main(0, 1)
        if o.asym and o.bcy == -1: self.cbar("B", True)
        self.stamp("prol")

    def iteration(self, b, NB=32):
        e = self.e; o = self.o
        if o.prio == "saw": e.other(f"s_setprio {3 - (b % 4)}")
        if o.prio == "saw2": e.other(f"s_setprio {1 - (b % 2)}")
        nxt = b + 1 < NB
        act = {i: [] for i in range(33)}
        def at(i, fn): act[i].append(fn)
        mp = o.mposx.get(b, o.mpos)
        rdpos = o.rdposx.get(b, o.rdpos)
        if b > 0: at(mp[0], lambda: self.mm_pv(b - 1, 3))
        if nxt: at(mp[1], lambda: self.mm_rem(b + 1))
        at(mp[2], lambda: self.mm_pv(b, 0))
        at(mp[3], lambda: self.mm_pv(b, 1))
        if nxt: at(mp[4], lambda: self.mm_main(b + 1, 0))
        if nxt: at(mp[5], lambda: self.mm_main(b + 1, 1))
        at(mp[6], lambda: self.mm_pv(b, 2))
        for (pos, fn) in self.hooks_pre.get(b, []): at(pos, fn)
        if b == 0:
            def b0c():
                if o.asym: self.cbar("B", False)
                else:
                    e.wait_vm_tag("B"); e.other("s_barrier")
            at(o.bcpos, b0c)
            if o.asym and o.bcy >= 0: at(o.bcy, lambda: self.cbar("B", True))
        k2 = b + 2 < NB
        names = ["kr", "v00", "v01", "v10", "v11", "k00", "k01", "k10", "k11", "v20", "v21", "v30", "v31"]
        fns = {
            "kr": (lambda: self.rd_kr(b + 2)) if k2 else None,
            "k00": (lambda: self.rd_k(b + 2, 0, 0)) if k2 else None,
            "k01": (lambda: self.rd_k(b + 2, 0, 1)) if k2 else None,
            "k10": (lambda: self.rd_k(b + 2, 1, 0)) if k2 else None,
            "k11": (lambda: self.rd_k(b + 2, 1, 1)) if k2 else None,
        }
        for g in range(4):
            for s2 in range(2):
                fns[f"v{g}{s2}"] = (lambda g=g, s2=s2: self.rd_v(b + 1, g, s2)) if nxt else None
        for nm, pos in sorted(zip(names, rdpos), key=lambda x: x[1]):
            skip = False
            if o.halfrd == 1 and b >= 1: skip = (nm[0] == "k") == (b % 2 == 1)
            if o.halfrd == 2 and b >= 1: skip = (nm in ("kr", "k00", "k01", "k10", "k11", "v00", "v01")) == (b % 2 == 1)
            if fns[nm] is not None and not (o.nolds and b >= 1) and not skip: at(pos, fns[nm])
        for (pos, fn) in self.hooks.get(b, []): at(pos, fn)
        if o.stamps:
            for (ib, ip) in o.istamp:
                if ib == b: act[ip].insert(0, lambda ib=ib, ip=ip: self.lstamp(f"i{ib}_{ip}"))
        if b > 0:
            for (pos, keep) in o.waits:
                at(pos, lambda keep=keep: e.wait(lgkm=keep))
        for i in range(32):
            for fn in act[i]: fn()
            self.ex(b, i)
        for fn in act[32]: fn()

    def build_hooks(self):
        o = self.o; e = self.e
        H = {}; HP = {}
        def add(b, pos, fn): H.setdefault(b, []).append((pos, fn))
        def addp(b, pos, fn): HP.setdefault(b, []).append((pos, fn))
        sched = o.dsched
        grp = o.groups
        tagof = {}
        for gi, (rounds, pit, cit) in enumerate(grp):
            for r in rounds: tagof[r] = f"g{gi+1}"
        if not o.nodma:
            for r in range(2, 9):
                itk, itv = sched[r - 2]
                pk = o.dpos[0]; pv = o.dpos[1] if itk == itv else o.dpos[0]
                add(itk, pk - 1, lambda r=r: self.m0_set("k", r))
                add(itk, pk, lambda r=r: self.dma("k", r, tagof[r]))
                add(itv, pv - 1, lambda r=r: self.m0_set("v", r))
                add(itv, pv, lambda r=r: self.dma("v", r, tagof[r]))
        for gi, (rounds, pit, cit) in enumerate(grp):
            g = gi + 1
            if o.sync == "none": continue
            if o.sync == "flag":
                add(pit, o.ppos, lambda g=g: self.post(g, f"g{g}"))
                add(cit - 1, o.fpos, lambda g=g: self.flag_read(g))
                addp(cit, 0, lambda g=g: self.flag_check(g))
                addp(cit, 1, lambda g=g: self.flag_branch(g))
            else:
                def bar(g=g):
                    e.wait_vm_tag(f"g{g}")
                    e.other("s_barrier")
                if o.asym and g in o.ypos:
                    yit, yp = o.ypos[g]
                    addp(yit, yp, lambda g=g: self.cbar(f"g{g}", True))
                    addp(cit, o.gpos.get(g, 0), lambda g=g: self.cbar(f"g{g}", False))
                else:
                    addp(cit, o.gpos.get(g, 0), bar)
        if o.splitg1:
            def barv():
                e.wait_vm_tag("g1v"); e.other("s_barrier")
            addp(o.splitg1[0], o.splitg1[1], barv)
        self.hooks = H; self.hooks_pre = HP

    def combine(self):
        e = self.e
        E, D = vOe, vOo
        e.valu(f"v_cmp_lt_u32 vcc, 31, v{vLANE}", rd={vLANE}, sw={"vcc"})
        for k in range(2):
            e.emit(Ins(f"v_permlane32_swap_b32 v{D+k}, v{D+4+k}", "perm", rd={D + k, D + 4 + k}, wr={D + k, D + 4 + k}))
        for k in range(2):
            e.emit(Ins(f"v_permlane32_swap_b32 v{D+4+k}, v{D+8+k}", "perm", rd={D + 4 + k, D + 8 + k}, wr={D + 4 + k, D + 8 + k}))
        for k in range(2):
            e.valu(f"v_add_f32 v{E+k}, v{E+k}, v{D+2+k}", wr={E + k}, rd={E + k, D + 2 + k})
            e.valu(f"v_add_f32 v{E+4+k}, v{E+4+k}, v{D+6+k}", wr={E + 4 + k}, rd={E + 4 + k, D + 6 + k})
            e.valu(f"v_add_f32 v{E+8+k}, v{E+8+k}, v{D+10+k}", wr={E + 8 + k}, rd={E + 8 + k, D + 10 + k})
        e.valu(f"v_add_f32 v{E+12}, v{E+12}, v{D+12}", wr={E + 12}, rd={E + 12, D + 12})
        for k in range(2):
            a, b2 = vT[2 * k], vT[2 * k + 1]
            e.valu(f"v_cndmask_b32 v{a}, v{D+4+k}, v{D+k}, vcc", wr={a}, rd={D + 4 + k, D + k}, sr={"vcc"})
            e.valu(f"v_cndmask_b32 v{b2}, v{D+8+k}, v{D+4+k}, vcc", wr={b2}, rd={D + 8 + k, D + 4 + k}, sr={"vcc"})
            e.valu(f"v_add_f32 v{E+2+k}, v{E+2+k}, v{a}", wr={E + 2 + k}, rd={E + 2 + k, a})
            e.valu(f"v_add_f32 v{E+6+k}, v{E+6+k}, v{b2}", wr={E + 6 + k}, rd={E + 6 + k, b2})

    def epilogue(self):
        e = self.e
        O = vOe; L = O + 12
        t = vT
        e.trans(f"v_rcp_f32 v{t[0]}, v{L}", wr={t[0]}, rd={L})
        for i in range(10):
            e.valu(f"v_mul_f32 v{O+i}, v{O+i}, v{t[0]}", wr={O + i}, rd={O + i, t[0]})
        P = 24
        for j in range(5):
            e.valu(f"v_cvt_pk_bf16_f32 v{P+j}, v{O+2*j}, v{O+2*j+1}", wr={P + j}, rd={O + 2 * j, O + 2 * j + 1})
        e.emit(Ins(f"v_permlane32_swap_b32 v{P}, v{P+2}", "perm", rd={P, P + 2}, wr={P, P + 2}))
        e.emit(Ins(f"v_permlane32_swap_b32 v{P+1}, v{P+3}", "perm", rd={P + 1, P + 3}, wr={P + 1, P + 3}))
        e.nop(1)
        pol = self.o.stpol
        e.emit(Ins(f"buffer_store_dwordx4 {vr(P,4)}, v{vQsrc}, s[{sOut}:{sOut+3}], s{sQoff} offen{pol}", "vstore", rd=R(P, 4) | {vQsrc}))
        e.salu("s_mov_b64 exec, 0xffffffff")
        e.emit(Ins(f"buffer_store_dword v{P+4}, v{vQsrc}, s[{sOut}:{sOut+3}], s{sQoff} offen offset:32{pol}", "vstore", rd={P + 4, vQsrc}))

    def check(self):
        e = self.e
        O = vOe; L = O + 12
        t = vT
        e.valu(f"v_mul_f32 v{t[0]}, 0, v{O}", wr={t[0]}, rd={O})
        e.valu(f"v_mul_f32 v{t[1]}, 0, v{O+1}", wr={t[1]}, rd={O + 1})
        for i in range(2, 10):
            r = t[i & 1]
            e.valu(f"v_fma_f32 v{r}, v{O+i}, 0, v{r}", wr={r}, rd={O + i, r})
        e.salu(f"s_mov_b32 s{sTmp}, 0x{f32bits(2.0**-60):08x}")
        e.salu(f"s_mov_b32 s{sTmp+1}, 0x{f32bits(2.0**60):08x}")
        e.valu(f"v_add_f32 v{t[0]}, v{t[0]}, v{t[1]}", wr={t[0]}, rd={t[0], t[1]})
        e.valu(f"v_cmp_le_f32 s[4:5], s{sTmp}, v{L}", rd={L}, sw={"s4"})
        e.valu(f"v_cmp_ge_f32 s[6:7], s{sTmp+1}, v{L}", rd={L}, sw={"s6"})
        e.valu(f"v_cmp_eq_f32 vcc, 0, v{t[0]}", rd={t[0]}, sw={"vcc"})
        e.nop(1)
        e.salu("s_and_b64 s[4:5], s[4:5], s[6:7]", sr={"s4", "s6"})
        e.salu("s_and_b64 s[4:5], s[4:5], vcc", sr={"vcc"})
        e.salu("s_cmp_eq_u64 s[4:5], -1")
        if not self.o.nocheck: e.other("s_cbranch_scc0 L_fallback")

    def fallback(self):
        e = self.e
        e.label("L_fallback")
        e.reset_hist()
        A0, A1, KRp = vKA[0][0], vKA[0][1], vKR[0]
        X = SB[0]
        ka, kr, va, vd = vT[2], vT[3], vT[4], vT[5]
        def W(text): e.raw("    " + text)
        W(f"v_mov_b32 v{vB2z}, v{vB2}")
        W(f"v_mov_b32 v{vB2z+1}, 0")
        W(f"v_mov_b32 v{vM}, 0xff800000")
        def scores():
            W(f"ds_read_b64 {vr(A0,2)}, v{ka} offset:40")
            W(f"ds_read_b64 {vr(A0+2,2)}, v{ka} offset:48")
            W(f"ds_read_b64 {vr(A1,2)}, v{ka}")
            W(f"ds_read_b64 {vr(A1+2,2)}, v{ka} offset:8")
            W(f"ds_read_b32 v{KRp}, v{kr}")
            W("s_waitcnt lgkmcnt(0)")
            W(f"v_mfma_f32_32x32x16_bf16 {vr(X,16)}, {vr(A0,4)}, {vr(vQo,4)}, 0")
            W(f"v_mfma_f32_32x32x16_bf16 {vr(X+16,16)}, {vr(A1,4)}, {vr(vQe,4)}, 0")
            W("s_nop 15")
            W(f"v_mfma_f32_32x32x4_2b_bf16 {vr(X,32)}, {vr(KRp,2)}, {vr(vB2z,2)}, {vr(X,32)}")
            W("s_nop 15"); W("s_nop 7")
        W(f"v_mov_b32 v{ka}, v{vKa[0]}")
        W(f"v_mov_b32 v{kr}, v{vKr[0]}")
        W(f"s_mov_b32 s{sFb}, 32")
        e.label("L_fb1")
        scores()
        for i in range(0, 32, 2):
            W(f"v_max3_f32 v{vM}, v{vM}, v{X+i}, v{X+i+1}")
        W(f"v_add_u32 v{ka}, {BLK}, v{ka}")
        W(f"v_add_u32 v{kr}, {BLK}, v{kr}")
        W(f"s_sub_u32 s{sFb}, s{sFb}, 1")
        W(f"s_cmp_lg_u32 s{sFb}, 0")
        W("s_cbranch_scc1 L_fb1")
        W(f"v_mov_b32 v{vM+1}, v{vM}")
        W("s_nop 1")
        W(f"v_permlane32_swap_b32 v{vM}, v{vM+1}")
        W("s_nop 1")
        W(f"v_max_f32 v{vM}, v{vM}, v{vM+1}")
        for i in range(16):
            W(f"v_mov_b32 v{vOo+i}, 0"); W(f"v_mov_b32 v{vOe+i}, 0")
        W(f"v_mov_b32 v{ka}, v{vKa[0]}")
        W(f"v_mov_b32 v{kr}, v{vKr[0]}")
        W(f"v_mov_b32 v{va}, v{vVa[0]}")
        W(f"v_sub_u32 v{vd}, v{vVa[1]}, v{vVa[0]}")
        W(f"v_lshrrev_b32 v{vd}, 2, v{vd}")
        W(f"s_mov_b32 s{sFb}, 32")
        e.label("L_fb2")
        VF = vVF[0]
        for g in range(4):
            for s2 in range(2):
                off = 1152 * (g & 1) + 288 * s2 + (32 if g < 2 else 0)
                W(f"ds_read_b64_tr_b16 {vr(VF+4*g+2*s2,2)}, v{va} offset:{off}")
        scores()
        for i in range(32):
            W(f"v_sub_f32 v{X+i}, v{X+i}, v{vM}")
        for i in range(32):
            W(f"v_exp_f32 v{X+i}, v{X+i}")
        W("s_nop 1")
        for g in range(4):
            O = vOo if g < 2 else vOe
            W(f"v_smfmac_f32_32x32x32_bf16 {vr(O,16)}, {vr(VF+4*g,4)}, {vr(X+8*g,8)}, v{vIDX}")
        W("s_nop 7")
        W(f"v_add_u32 v{ka}, {BLK}, v{ka}")
        W(f"v_add_u32 v{kr}, {BLK}, v{kr}")
        W(f"v_add_u32 v{va}, v{vd}, v{va}")
        W(f"s_sub_u32 s{sFb}, s{sFb}, 1")
        W(f"s_cmp_lg_u32 s{sFb}, 0")
        W("s_cbranch_scc1 L_fb2")
        W("s_nop 15")
        W(f"s_mov_b32 s{sFb+1}, 1")
        W("s_branch L_combine")

    def spinloops(self):
        e = self.e
        for g in self.spins:
            e.label(f"L_spin{g}")
            e.raw(f"    ds_read_b32 v{vFlagV}, v{vFlagR} offset:{32*g}")
            e.raw("    s_waitcnt lgkmcnt(0)")
            e.raw(f"    v_cmp_ne_u32 vcc, v{vIDX}, v{vFlagV}")
            e.raw("    s_nop 1")
            e.raw(f"    s_cbranch_vccnz L_spin{g}")
            e.raw(f"    s_branch L_back{g}")

    def dump_stamps(self):
        if not self.o.stamps: return
        e = self.e
        n = self.nstamp
        W = lambda t: e.raw("    " + t)
        W("s_mov_b64 exec, 1")
        W("s_and_b32 s15, s15, 0xffff")
        W("s_mov_b32 s4, s14"); W("s_mov_b32 s5, s15"); W("s_mov_b32 s6, 0x1000000"); W("s_mov_b32 s7, 0x20000")
        W("s_lshl_b32 s8, s2, 3"); W(f"s_add_u32 s8, s8, s{sW}"); W("s_lshl_b32 s8, s8, 7")
        for i in range(n):
            W(f"s_sub_u32 s9, s{sStamp+2*i}, s{sStamp}")
            W("v_mov_b32 v1, s9")
            W(f"v_mov_b32 v2, {4*i}")
            W("buffer_store_dword v1, v2, s[4:7], s8 offen")
            W("s_nop 1")
        W("s_sub_u32 s9, s98, s96")
        W("v_mov_b32 v1, s9")
        W(f"v_mov_b32 v2, {4*n}")
        W("buffer_store_dword v1, v2, s[4:7], s8 offen")
        W("s_nop 1")
        W("v_mov_b32 v1, s96")
        W(f"v_mov_b32 v2, {4*n+4}")
        W("buffer_store_dword v1, v2, s[4:7], s8 offen")
        W("s_nop 1")
        W("v_mov_b32 v1, s98")
        W(f"v_mov_b32 v2, {4*n+8}")
        W("buffer_store_dword v1, v2, s[4:7], s8 offen")
        W("s_waitcnt vmcnt(0)")
        self.stampnames += ["rt", "rt0", "rt1"]

    def build(self):
        e = self.e; o = self.o
        self.build_hooks()
        self.prologue()
        for b in range(32):
            self.iteration(b)
            if o.stamps and (f"it{b}" in o.stampsel):
                self.stamp(f"it{b}")
        e.nop(2)
        self.mm_pv(31, 3)
        self.stamp("loop")
        e.salu(f"s_mov_b32 s{sFb+1}, 0")
        if o.force_fb:
            e.nop(16)
            e.other("s_branch L_fallback")
        e.label("L_combine")
        self.combine()
        e.salu(f"s_cmp_lg_u32 s{sFb+1}, 0")
        e.other("s_cbranch_scc1 L_store")
        self.check()
        e.label("L_store")
        self.epilogue()
        if o.repeat > 1:
            e.raw("    s_mov_b64 exec, -1")
            e.raw("    s_waitcnt vmcnt(0) lgkmcnt(0)")
            e.raw("    s_barrier")
            e.raw("    s_sub_u32 s50, s50, 1")
            e.raw("    s_cmp_lg_u32 s50, 0")
            e.raw("    s_cbranch_scc1 L_again")
        self.stamp("end")
        self.dump_stamps()
        e.label("L_end")
        e.raw("    s_endpgm")
        self.spinloops()
        self.fallback()
        body = e.text()
        if o.align:
            import alignpass
            body, msg = alignpass.align(body, mode=o.align - 1)
            e.log.append(msg)
        src = HEADER
        src += "; Override launch geometry by editing the next line (default: block=256,\n; grid=ceil(out_elems/256), lds=0). Harness parses it; keep it on one line.\n"
        src += f"; @launch grid=(256,1,1) block=(512,1,1) lds={LDS_BYTES}\n"
        src += f""".amdgcn_target "amdgcn-amd-amdhsa--gfx950"
.text
.globl {NAME}_kernel
.p2align 8
.type {NAME}_kernel,@function
{NAME}_kernel:
{body}.section .rodata,"a"
.p2align 6
.amdhsa_kernel {NAME}_kernel
  .amdhsa_next_free_vgpr {vNV}
  .amdhsa_next_free_sgpr 102
  .amdhsa_accum_offset {vNV}
  .amdhsa_group_segment_fixed_size 0
  .amdhsa_kernarg_size 48
  .amdhsa_user_sgpr_count 2
  .amdhsa_user_sgpr_kernarg_segment_ptr 1
  .amdhsa_system_sgpr_workgroup_id_x 1
.end_amdhsa_kernel
"""
        return src

def get_opts(argv=None):
    p = argparse.ArgumentParser()
    p.add_argument("-o", default="cdna_kernels/" + NAME + ".s")
    p.add_argument("--stamps", type=int, default=0)
    p.add_argument("--stampsel", default="")
    p.add_argument("--force_fb", type=int, default=0)
    p.add_argument("--nocheck", type=int, default=0)
    p.add_argument("--rot", type=int, default=0)
    p.add_argument("--ordbar", type=int, default=1)
    p.add_argument("--sync", default="bar")
    p.add_argument("--nodma", type=int, default=0)
    p.add_argument("--nolds", type=int, default=0)
    p.add_argument("--diag", type=int, default=0)
    p.add_argument("--istamp", default="")
    p.add_argument("--halfrd", type=int, default=0)
    p.add_argument("--k128", type=int, default=0)
    p.add_argument("--mpos", default="2,4,12,18,22,26,29")
    p.add_argument("--rdpos", default="2,2,4,4,12,12,18,18,22,22,26,26,29")
    p.add_argument("--waits", default="4:2,22:9")
    p.add_argument("--dsched", default="0:0,1:2,3:4,5:6,7:8,9:10,11:12")
    p.add_argument("--dpos", default="23,27")
    p.add_argument("--groups", default="1;0;1/2;3;5/3,4;6;8/5,6;10;15/7,8;14;22")
    p.add_argument("--ppos", type=int, default=30)
    p.add_argument("--fpos", type=int, default=29)
    p.add_argument("--stpol", default="")
    p.add_argument("--repeat", type=int, default=1)
    p.add_argument("--qearly", type=int, default=0)
    p.add_argument("--vearly", type=int, default=1)
    p.add_argument("--lrows", type=int, default=2)
    p.add_argument("--nk", type=int, default=5)
    p.add_argument("--ord", default="A,bar,Q,B,S,K1,V1")
    p.add_argument("--qpol", default="nt")
    p.add_argument("--apol", default="nt")
    p.add_argument("--bpol", default="nt")
    p.add_argument("--r1pol", default="nt")
    p.add_argument("--kvpol", default="")
    p.add_argument("--bcpos", type=int, default=16)
    p.add_argument("--asym", type=int, default=0)
    p.add_argument("--bcy", type=int, default=-1)
    p.add_argument("--ypos", default="")
    p.add_argument("--splitg1", default="")
    p.add_argument("--gpos", default="")
    p.add_argument("--rdposx", default="0=16,16,18,18,20,22,22,24,24,26,26,29,29")
    p.add_argument("--mposx", default="")
    p.add_argument("--align", type=int, default=0)
    p.add_argument("--prio", default="saw")
    o = p.parse_args(argv)
    assert o.sync in ("bar", "none"), "flags are not initialised by this generator"
    o.stampsel = [x for x in o.stampsel.split(",") if x]
    o.rdpos = [int(x) for x in o.rdpos.split(",")]
    o.mpos = [int(x) for x in o.mpos.split(",")]
    def perit(t): return {int(x.split("=")[0]): [int(y) for y in x.split("=")[1].split(",")] for x in t.split("/") if x}
    o.rdposx = perit(o.rdposx); o.mposx = perit(o.mposx)
    o.ord = o.ord.split(",")
    o.ypos = {int(x.split(":")[0]): (int(x.split(":")[1]), int(x.split(":")[2])) for x in o.ypos.split(",") if x}
    o.istamp = [tuple(int(y) for y in x.split(":")) for x in o.istamp.split(",") if x]
    for nm in ("qpol", "apol", "bpol", "r1pol", "kvpol"):
        x = getattr(o, nm); x = "" if x == "none" else x
        setattr(o, nm, (" " + x.replace("+", " ")) if x else "")
    o.splitg1 = [int(x) for x in o.splitg1.split(",")] if o.splitg1 else None
    o.gpos = {int(x.split(":")[0]): int(x.split(":")[1]) for x in o.gpos.split(",") if x}
    o.dpos = [int(x) for x in o.dpos.split(",")]
    o.waits = [tuple(int(y) for y in x.split(":")) for x in o.waits.split(",") if x]
    o.dsched = [tuple(int(y) for y in x.split(":")) for x in o.dsched.split(",")]
    o.groups = [([int(r) for r in g.split(";")[0].split(",")], int(g.split(";")[1]), int(g.split(";")[2])) for g in o.groups.split("/")]
    if o.stpol: o.stpol = " " + o.stpol.replace("+", " ")
    return o

if __name__ == "__main__":
    o = get_opts()
    g = Gen(o)
    src = g.build()
    open(o.o, "w").write(src)
    print("instructions:", g.e.nins, "nop states:", g.e.nops, "bytes src:", len(src))
    for l in g.e.log[:60]: print("  ", l)
    if o.stamps: print("stamps:", ",".join(g.stampnames))
```
